```python
import torch

def _softmax(x, axis=-1):
    return torch.softmax(x, dim=axis)

def _gelu(x):
    return torch.nn.functional.gelu(x, approximate='tanh')

def _silu(x):
    return torch.nn.functional.silu(x)

def _sigmoid(x):
    return torch.sigmoid(x)

def _layernorm(x, axis=-1, eps=1e-05):
    m = x.mean(dim=axis, keepdim=True)
    v = x.var(dim=axis, keepdim=True, unbiased=False)
    return (x - m) / torch.sqrt(v + eps)

def _scatter_add(tgt, idx, src, axis=0):
    return tgt.clone().index_add_(axis, idx, src)

def _segment_sum(src, seg, n):
    out = torch.zeros((n,) + src.shape[1:], dtype=src.dtype)
    return out.index_add_(0, seg, src)

def _pad(x, pw):
    flat = tuple((v for pair in reversed(pw) for v in pair))
    return torch.nn.functional.pad(x, flat)
kernel_name = 'adaLN_cond__grouped_kv_mqa__mixer_gmlp__prompt'

def setup_inputs():

    _w = lambda a: (lambda t: t.to(torch.bfloat16) if t.is_floating_point() else t)(torch.as_tensor(a))

    def _A_setup():
        B, S, D, H = (1, 2048, 1024, 32)
        Dh = D // H
        return {'x': _w((lambda *s: torch.randn(*s, dtype=torch.bfloat16) * 0.05)(B, S, D)), 'wq': _w((lambda *s: torch.randn(*s, dtype=torch.bfloat16) * 0.05)(D, H * Dh)), 'wk': _w((lambda *s: torch.randn(*s, dtype=torch.bfloat16) * 0.05)(D, Dh)), 'wv': _w((lambda *s: torch.randn(*s, dtype=torch.bfloat16) * 0.05)(D, Dh)), 'wo': _w((lambda *s: torch.randn(*s, dtype=torch.bfloat16) * 0.05)(H * Dh, D))}
    _A_in = _A_setup()

    def _B_setup():
        B, S, D, F = (1, 2048, 1024, 3584)
        Fh = F // 2
        return {'x': _w((lambda *s: torch.randn(*s, dtype=torch.bfloat16) * 0.05)(B, S, D)), 'w_in': _w((lambda *s: torch.randn(*s, dtype=torch.bfloat16) * 0.8)(D, 2 * Fh)), 'w_sp': _w(0.01 * (lambda *s: torch.randn(*s, dtype=torch.bfloat16) * 0.8)(S, S)), 'b_sp': _w(1.0 + 0.01 * (lambda *s: torch.randn(*s, dtype=torch.bfloat16) * 0.05)(S)), 'w_out': _w((lambda *s: torch.randn(*s, dtype=torch.bfloat16) * 0.05)(Fh, D))}
    _B_in = _B_setup()
    return {'A_x': _A_in['x'], 'A_wq': _A_in['wq'], 'A_wk': _A_in['wk'], 'A_wv': _A_in['wv'], 'A_wo': _A_in['wo'], 'B_x': _B_in['x'], 'B_w_in': _B_in['w_in'], 'B_w_sp': _B_in['w_sp'], 'B_b_sp': _B_in['b_sp'], 'B_w_out': _B_in['w_out'], 'c': _w((lambda *s: torch.randn(*s, dtype=torch.bfloat16) * 0.1)(1, 1024) * 8.0), 'w_mod': _w((lambda *s: torch.randn(*s, dtype=torch.bfloat16) * 0.1)(1024, 6 * 1024) * 1024 ** (-0.5) * 8.0)}

def reference(A_x, A_wq, A_wk, A_wv, A_wo, B_x, B_w_in, B_w_sp, B_b_sp, B_w_out, c, w_mod):

    def _A_ref(x, wq, wk, wv, wo):
        B, S, D = x.shape
        H = 32
        Dh = D // H
        q = (lambda x, *d: x.permute(*d))((x @ wq).reshape(B, S, H, Dh), 0, 2, 1, 3)
        k = x @ wk
        v = x @ wv
        scores = torch.einsum('bhqd,bkd->bhqk', q, k) * Dh ** (-0.5)
        p = _softmax(scores, axis=-1)
        o = torch.einsum('bhqk,bkd->bhqd', p, v)
        return (lambda x, *d: x.permute(*d))(o, 0, 2, 1, 3).reshape(B, S, H * Dh) @ wo

    def _B_ref(x, w_in, w_sp, b_sp, w_out):
        B, S, D = x.shape
        F = w_in.shape[-1]
        Fh = F // 2
        z = _gelu(torch.einsum('bsd,df->bsf', x, w_in))
        z1 = z[..., :Fh].clone()
        z2 = _layernorm(z[..., Fh:], axis=-1)
        g = torch.einsum('ts,bsf->btf', w_sp, z2) + b_sp[None, :, None]
        return torch.einsum('bsf,fd->bsd', z1 * g, w_out)
    x = A_x
    mod = (_silu(c) @ w_mod).reshape(c.shape[0], 6, 1, -1)
    sa, ca, ga, sb, cb, gb = (mod[:, 0].clone(), mod[:, 1].clone(), mod[:, 2].clone(), mod[:, 3].clone(), mod[:, 4].clone(), mod[:, 5].clone())
    h = _layernorm(x, axis=-1) * (1 + ca) + sa
    x = x + ga * _A_ref(h, A_wq, A_wk, A_wv, A_wo)
    h = _layernorm(x, axis=-1) * (1 + cb) + sb
    x = x + gb * _B_ref(h, B_w_in, B_w_sp, B_b_sp, B_w_out)
    return x
```

```python
import sys, struct

NAME = "adaLN_cond__grouped_kv_mqa__mixer_gmlp__prompt"

KA = dict(x=0, wq=8, wk=16, wv=24, wo=32, bx=40, w_in=48, w_sp=56, b_sp=64, w_out=72,
          c=80, w_mod=88, out=96, dbg=104, ws=112)

WS_MODF = 0x0
WS_UT   = 0x8000
WS_KN   = 0x10000
WS_ST2  = 0x20000
WS_ST3  = 0x60000
WS_KV   = 0xA0000
WS_H    = 0x100000
WS_O    = 0x500000
WS_X2   = 0x900000
WS_X2P  = 0xD00000
WS_Z1   = 0x1100000
WS_Z2   = 0x1800000
WS_Y    = 0x1F00000
WS_END  = 0x2600000

LOG2E = 1.4426950408889634


def f2u(x):
    return struct.unpack("<I", struct.pack("<f", x))[0]


def fx(x):
    return hex(f2u(x))


def vr(b, n=1):
    return f"v{b}" if n == 1 else f"v[{b}:{b+n-1}]"


def sr(b, n=1):
    return f"s{b}" if n == 1 else f"s[{b}:{b+n-1}]"


class Kern:
    def __init__(self, name, grid, block, lds, vgpr, sgpr=96):
        self.name, self.grid, self.block, self.lds, self.vgpr, self.sgpr = name, grid, block, lds, vgpr, sgpr
        self.L = []

    def __call__(self, s):
        for l in s.strip("\n").split("\n"):
            l = l.strip()
            if l:
                self.L.append(l if l.endswith(":") else "    " + l)

    def lab(self, s):
        return f"L_{self.name}_{s}"

    def label(self, s):
        self.L.append(self.lab(s) + ":")

    def ptr(self, dst, key):
        self(f"s_load_dwordx2 {sr(dst,2)}, s[0:1], {KA[key]}")

    def srd(self, d, ptr, size, off=0):
        if off == 0:
            self(f"s_mov_b32 s{d}, s{ptr}\ns_mov_b32 s{d+1}, s{ptr+1}")
        else:
            o = off if isinstance(off, str) else hex(off)
            self(f"s_add_u32 s{d}, s{ptr}, {o}\ns_addc_u32 s{d+1}, s{ptr+1}, 0")
        self(f"s_mov_b32 s{d+2}, {hex(size)}\ns_mov_b32 s{d+3}, 0x00020000")

    def exit_if_ge(self, n):
        self(f"s_cmp_ge_u32 s2, {n}\ns_cbranch_scc1 {self.lab('end')}")

    def wave_id(self, sdst, vtmp):
        self(f"v_lshrrev_b32 v{vtmp}, 6, v0\ns_nop 0\nv_readfirstlane_b32 s{sdst}, v{vtmp}\ns_nop 3")

    def text(self):
        kn = f"{self.name}_kernel"
        out = [f".globl {kn}", ".p2align 8", f".type {kn},@function", f"{kn}:"]
        out += self.L
        out += [self.lab("end") + ":", "    s_endpgm"]
        return "\n".join(out) + "\n"

    def desc(self):
        kn = f"{self.name}_kernel"
        acc = (self.vgpr + 3) // 4 * 4
        return f""".p2align 6
.amdhsa_kernel {kn}
  .amdhsa_next_free_vgpr {self.vgpr}
  .amdhsa_next_free_sgpr {self.sgpr}
  .amdhsa_accum_offset {acc}
  .amdhsa_group_segment_fixed_size 0
  .amdhsa_kernarg_size 120
  .amdhsa_user_sgpr_count 2
  .amdhsa_user_sgpr_kernarg_segment_ptr 1
  .amdhsa_system_sgpr_workgroup_id_x 1
.end_amdhsa_kernel
"""

    def launch(self):
        return f"; @launch kernel={self.name}_kernel grid=({self.grid},1,1) block=({self.block},1,1) lds={self.lds}"


def mfma(d, a, b, c=None):
    cs = vr(d, 16) if c is None else (c if isinstance(c, str) else vr(c, 16))
    return f"v_mfma_f32_32x32x16_bf16 {vr(d,16)}, {vr(a,4)}, {vr(b,4)}, {cs}"


def half_allreduce(k, op, v, t):
    k(f"""v_mov_b32 v{t}, v{v}
    s_nop 1
    v_permlane32_swap_b32 v{t}, v{v}
    s_nop 1
    {op} v{v}, v{v}, v{t}""")


def wave_allreduce(k, op, regs, tmps):
    pad = max(0, 2 - (len(regs) - 1))
    for ctl in ("quad_perm:[1,0,3,2]", "quad_perm:[2,3,0,1]", "row_half_mirror", "row_mirror"):
        if pad:
            k(f"s_nop {pad-1}")
        for v in regs:
            k(f"{op}_dpp v{v}, v{v}, v{v} {ctl} row_mask:0xf bank_mask:0xf")
    for sw in ("v_permlane16_swap_b32", "v_permlane32_swap_b32"):
        for v, t in zip(regs, tmps):
            k(f"v_mov_b32 v{t}, v{v}")
        k("s_nop 1")
        for v, t in zip(regs, tmps):
            k(f"{sw} v{t}, v{v}")
        k("s_nop 1")
        for v, t in zip(regs, tmps):
            k(f"{op} v{v}, v{v}, v{t}")


def tr_lane_base(k, vd, vt, vlane, rowbytes, korder, swz):
    hm = 4 if korder == "perm" else 8
    k(f"""v_lshrrev_b32 v{vd}, 5, v{vlane}
    v_mul_u32_u24 v{vd}, {hm}, v{vd}
    v_bfe_u32 v{vt}, v{vlane}, 2, 2
    v_add_u32 v{vd}, v{vd}, v{vt}
    v_mul_u32_u24 v{vd}, {rowbytes}, v{vd}
    v_bfe_u32 v{vt}, v{vlane}, 4, 1
    v_lshl_add_u32 v{vd}, v{vt}, 5, v{vd}
    v_and_b32 v{vt}, 3, v{vlane}
    v_lshl_add_u32 v{vd}, v{vt}, 3, v{vd}""")
    if swz:
        k(f"""v_bfe_u32 v{vt}, v{vlane}, 3, 1
        v_lshl_add_u32 v{vd}, v{vt}, 6, v{vd}""")


def dma64_lane_off(k, vd, vt, vlane, rs):
    k(f"""v_lshrrev_b32 v{vd}, 3, v{vlane}
    v_mul_u32_u24 v{vd}, {rs}, v{vd}
    v_bfe_u32 v{vt}, v{vlane}, 4, 1
    v_lshlrev_b32 v{vt}, 2, v{vt}
    v_xor_b32 v{vt}, v{vt}, v{vlane}
    v_and_b32 v{vt}, 7, v{vt}
    v_lshl_add_u32 v{vd}, v{vt}, 4, v{vd}""")


GV_VEC = 131072
GV_RED = GV_VEC + 4096
GV_LDS = GV_RED + 4096


def gemv_issue(k, srdW, rs, s_col, s_wave, vlane):
    dma64_lane_off(k, 4, 5, vlane, rs)
    k(f"""s_mul_i32 s40, s{s_wave}, {128*rs}
    s_add_u32 s40, s40, s{s_col}
    s_lshl_b32 s41, s{s_wave}, 14""")
    for i in range(16):
        k(f"""s_mov_b32 m0, s41
        s_add_u32 s41, s41, 1024
        buffer_load_dwordx4 v4, {sr(srdW,4)}, s40 offen lds
        s_add_u32 s40, s40, {8*rs}""")


def gemv_compute(k, s_wave, vlane, two):
    tr_lane_base(k, 6, 5, vlane, 128, "std", True)
    k(f"""s_lshl_b32 s41, s{s_wave}, 14
    v_add_u32 v6, s41, v6
    v_xor_b32 v7, 64, v6
    v_lshrrev_b32 v9, 5, v{vlane}
    v_lshlrev_b32 v9, 4, v9
    s_lshl_b32 s41, s{s_wave}, 8
    s_add_u32 s41, s41, {GV_VEC}
    v_add_u32 v9, s41, v9""")
    if two:
        k(f"""v_and_b32 v5, 1, v{vlane}
        v_lshl_add_u32 v9, v5, 11, v9""")
    for a in range(8):
        k(f"ds_read_b128 {vr(64+4*a,4)}, v9 offset:{a*32}")
    for a in range(8):
        b = 48 + 8 * (a & 1)
        k(f"s_waitcnt vmcnt({14-2*a})")
        k(f"""ds_read_b64_tr_b16 {vr(b,2)}, v6 offset:{a*2048}
        ds_read_b64_tr_b16 {vr(b+2,2)}, v6 offset:{a*2048+512}
        ds_read_b64_tr_b16 {vr(b+4,2)}, v7 offset:{a*2048}
        ds_read_b64_tr_b16 {vr(b+6,2)}, v7 offset:{a*2048+512}
        s_waitcnt lgkmcnt(0)""")
        k(mfma(16, 64 + 4 * a, b, "0" if a == 0 else None))
        k(mfma(32, 64 + 4 * a, b + 4, "0" if a == 0 else None))
    k(f"""v_cmp_gt_u32 vcc, 32, v{vlane}
    s_lshl_b32 s41, s{s_wave}, 9
    s_add_u32 s41, s41, {GV_RED}
    v_lshl_add_u32 v9, v{vlane}, 2, s41
    s_nop 15
    v_cndmask_b32 v10, v32, v16, vcc
    v_cndmask_b32 v11, v33, v17, vcc
    ds_write_b32 v9, v10
    ds_write_b32 v9, v11 offset:256
    s_waitcnt lgkmcnt(0)
    s_barrier
    v_lshlrev_b32 v9, 2, v0
    v_and_b32 v9, 511, v9
    v_add_u32 v9, {GV_RED}, v9""")
    for w in range(8):
        k(f"ds_read_b32 v{16+w}, v9 offset:{w*512}")
    k("s_waitcnt lgkmcnt(0)")
    k("""v_add_f32 v16, v16, v17
    v_add_f32 v18, v18, v19
    v_add_f32 v20, v20, v21
    v_add_f32 v22, v22, v23
    v_add_f32 v16, v16, v18
    v_add_f32 v20, v20, v22
    v_add_f32 v8, v16, v20""")


def k_mod():
    k = Kern("mod", 128, 512, GV_LDS, 96)
    k.exit_if_ge(128)
    k.ptr(4, "c"); k.ptr(6, "w_mod"); k.ptr(8, "ws")
    k("v_and_b32 v1, 63, v0")
    k.wave_id(3, 2)
    k("s_waitcnt lgkmcnt(0)")
    k.srd(12, 4, 2048); k.srd(16, 6, 1024 * 12288); k.srd(20, 8, WS_END)
    k(f"s_cmp_lt_u32 s2, 96\ns_cbranch_scc1 {k.lab('gemv')}")
    k(f"""s_sub_u32 s24, s2, 96
    s_lshl_b32 s24, s24, 13
    s_add_u32 s24, s24, {hex(WS_ST3)}
    v_lshlrev_b32 v2, 4, v0
    v_mov_b32 v4, -1
    v_mov_b32 v5, -1
    v_mov_b32 v6, -1
    v_mov_b32 v7, -1
    buffer_store_dwordx4 v[4:7], v2, s[20:23], s24 offen
    s_branch {k.lab('end')}""")
    k.label("gemv")
    k("""v_lshlrev_b32 v2, 2, v0
    buffer_load_dword v3, v2, s[12:15], 0 offen
    s_lshl_b32 s24, s2, 7""")
    gemv_issue(k, 16, 12288, 24, 3, 1)
    k(f"""s_waitcnt vmcnt(16)
    v_lshlrev_b32 v10, 16, v3
    v_and_b32 v11, 0xffff0000, v3
    v_mul_f32 v12, {fx(-LOG2E)}, v10
    v_mul_f32 v13, {fx(-LOG2E)}, v11
    v_exp_f32 v12, v12
    v_exp_f32 v13, v13
    s_nop 0
    v_add_f32 v12, 1.0, v12
    v_add_f32 v13, 1.0, v13
    v_rcp_f32 v12, v12
    v_rcp_f32 v13, v13
    s_nop 0
    v_mul_f32 v10, v10, v12
    v_mul_f32 v11, v11, v13
    v_cvt_pk_bf16_f32 v10, v10, v11
    v_add_u32 v2, {GV_VEC}, v2
    ds_write_b32 v2, v10
    s_waitcnt lgkmcnt(0)
    s_barrier""")
    gemv_compute(k, 3, 1, False)
    k(f"""s_cmp_lg_u32 s3, 0
    s_cbranch_scc1 {k.lab('end')}
    v_cvt_pk_bf16_f32 v8, v8, v8
    v_lshlrev_b32 v8, 16, v8
    s_lshr_b32 s25, s2, 4
    s_cmp_eq_u32 s25, 1
    s_cselect_b32 s26, 1, 0
    s_cmp_eq_u32 s25, 4
    s_cselect_b32 s26, 1, s26
    s_cmp_eq_u32 s26, 0
    s_cbranch_scc1 {k.lab('st')}
    v_add_f32 v8, 1.0, v8
    v_cvt_pk_bf16_f32 v8, v8, v8
    v_lshlrev_b32 v8, 16, v8""")
    k.label("st")
    k(f"""s_lshl_b32 s24, s2, 8
    v_lshlrev_b32 v2, 2, v0
    buffer_store_dword v8, v2, s[20:23], s24 offen""")
    return k


def k_lnkv():
    HL = 65536
    NRM = HL + 128 * 528
    k = Kern("lnkv", 128 + 56, 512, GV_LDS, 128)
    k.exit_if_ge(184)
    k.ptr(4, "x"); k.ptr(6, "wk"); k.ptr(8, "wv"); k.ptr(10, "ws"); k.ptr(28, "w_in")
    k("v_and_b32 v1, 63, v0")
    k.wave_id(3, 2)
    k("s_waitcnt lgkmcnt(0)")
    k.srd(20, 10, WS_END)
    k(f"s_cmp_lt_u32 s2, 128\ns_cbranch_scc1 {k.lab('ln')}")
    k.srd(16, 28, 1024 * 7168)
    k(f"""v_lshlrev_b32 v2, 3, v0
    s_mov_b32 s24, {WS_MODF + 4*4096}
    s_mov_b32 s25, {WS_MODF + 3*4096}
    buffer_load_dwordx2 v[12:13], v2, s[20:23], s24 offen
    buffer_load_dwordx2 v[14:15], v2, s[20:23], s25 offen
    s_sub_u32 s26, s2, 128
    s_lshl_b32 s24, s26, 7""")
    gemv_issue(k, 16, 7168, 24, 3, 1)
    k(f"""s_waitcnt vmcnt(16)
    v_cvt_pk_bf16_f32 v12, v12, v13
    v_cvt_pk_bf16_f32 v14, v14, v15
    v_lshlrev_b32 v2, 2, v0
    v_add_u32 v2, {GV_VEC}, v2
    ds_write_b32 v2, v12
    ds_write_b32 v2, v14 offset:2048
    s_waitcnt lgkmcnt(0)
    s_barrier""")
    gemv_compute(k, 3, 1, True)
    k(f"""s_cmp_ge_u32 s3, 2
    s_cbranch_scc1 {k.lab('end')}
    s_mul_i32 s24, s3, {3584*4}
    s_lshl_b32 s26, s26, 8
    s_add_u32 s24, s24, s26
    s_add_u32 s24, s24, {WS_UT}
    v_lshlrev_b32 v2, 2, v1
    buffer_store_dword v8, v2, s[20:23], s24 offen
    s_branch {k.lab('end')}""")
    k.label("ln")
    k("""s_and_b32 s30, s2, 7
    s_lshr_b32 s31, s2, 4
    s_lshl_b32 s31, s31, 3
    s_add_u32 s30, s30, s31
    s_bfe_u32 s31, s2, 0x10003
    s_cmp_eq_u32 s31, 0
    s_cselect_b32 s6, s6, s8
    s_cselect_b32 s7, s7, s9""")
    k.srd(12, 4, 2048 * 2048); k.srd(16, 6, 65536)
    k(f"""v_lshlrev_b32 v2, 4, v1
    s_lshl_b32 s24, s30, 16
    s_lshl_b32 s25, s3, 13
    s_add_u32 s24, s24, s25
    s_add_u32 s26, s24, 4096""")
    X = 16
    for r in range(4):
        so = 24 if r < 2 else 26
        k(f"buffer_load_dwordx4 {vr(X+8*r,4)}, v2, s[12:15], s{so} offen offset:{(r&1)*2048}")
        k(f"buffer_load_dwordx4 {vr(X+8*r+4,4)}, v2, s[12:15], s{so} offen offset:{(r&1)*2048+1024}")
    G = 96
    k(f"v_lshlrev_b32 v3, 5, v1\ns_mov_b32 s27, {WS_MODF+4096}\ns_mov_b32 s32, {WS_MODF}")
    for j in range(4):
        k(f"buffer_load_dwordx4 {vr(G+4*j,4)}, v3, s[20:23], s27 offen offset:{(j>>1)*2048+(j&1)*16}")
    for j in range(4):
        k(f"buffer_load_dwordx4 {vr(G+16+4*j,4)}, v3, s[20:23], s32 offen offset:{(j>>1)*2048+(j&1)*16}")
    k("s_mov_b32 m0, s25\ns_add_u32 s26, s25, 4096")
    for i in range(4):
        k(f"buffer_load_dwordx4 v2, s[16:19], s25 offen offset:{i*1024} lds")
    k("s_mov_b32 m0, s26\ns_nop 0")
    for i in range(4):
        k(f"buffer_load_dwordx4 v2, s[16:19], s26 offen offset:{i*1024} lds")
    k(f"""v_mov_b32 v4, 0
    v_lshlrev_b32 v5, 2, v1
    v_add_u32 v5, {NRM}, v5
    ds_write_b32 v5, v4""")
    F = 48
    k(f"""v_mul_u32_u24 v6, 528, v1
    s_lshl_b32 s26, s3, 6
    s_add_u32 s26, s26, {HL}
    v_add_u32 v6, s26, v6""")
    for rp in range(2):
        k(f"s_waitcnt vmcnt({20 - 4*rp})")
        for r2 in range(2):
            r = 2 * rp + r2
            for j in range(8):
                k(f"v_lshlrev_b32 v{F+16*r2+2*j}, 16, v{X+8*r+j}")
                k(f"v_and_b32 v{F+16*r2+2*j+1}, 0xffff0000, v{X+8*r+j}")
        for r2 in range(2):
            b = F + 16 * r2
            k(f"v_add_f32 v{8+r2}, v{b}, v{b+1}")
            for j in range(2, 16):
                k(f"v_add_f32 v{8+r2}, v{8+r2}, v{b+j}")
        wave_allreduce(k, "v_add_f32", [8, 9], [10, 11])
        for r2 in range(2):
            k(f"v_mul_f32 v{8+r2}, {fx(1/1024)}, v{8+r2}")
        for r2 in range(2):
            b = F + 16 * r2
            for j in range(16):
                k(f"v_sub_f32 v{b+j}, v{b+j}, v{8+r2}")
        for r2 in range(2):
            b = F + 16 * r2
            k(f"v_mul_f32 v{8+r2}, v{b}, v{b}")
            for j in range(1, 16):
                k(f"v_fmac_f32 v{8+r2}, v{b+j}, v{b+j}")
        wave_allreduce(k, "v_add_f32", [8, 9], [10, 11])
        k(f"v_mov_b32 v10, {fx(1e-5)}")
        for r2 in range(2):
            k(f"v_fmamk_f32 v{8+r2}, v{8+r2}, {fx(1/1024)}, v10")
        for r2 in range(2):
            k(f"v_rsq_f32 v{8+r2}, v{8+r2}")
        if rp == 0:
            k("s_waitcnt vmcnt(8)")
        else:
            k("s_nop 0")
        for r2 in range(2):
            b = F + 16 * r2
            for j in range(16):
                k(f"v_mul_f32 v{b+j}, v{b+j}, v{8+r2}")
                k(f"v_fma_f32 v{b+j}, v{b+j}, v{G+j}, v{G+16+j}")
            for j in range(8):
                k(f"v_cvt_pk_bf16_f32 v{80+8*r2+j}, v{b+2*j}, v{b+2*j+1}")
            r = 2 * rp + r2
            k(f"ds_write_b128 v6, {vr(80+8*r2,4)} offset:{r*16}")
            k(f"ds_write_b128 v6, {vr(84+8*r2,4)} offset:{r*16+64*528}")
    k("s_waitcnt lgkmcnt(0)\ns_barrier")
    k(f"""v_lshrrev_b32 v6, 5, v1
    v_mul_u32_u24 v6, 528, v6
    v_and_b32 v7, 31, v1
    v_lshl_add_u32 v6, v7, 4, v6
    s_mul_i32 s26, s3, {16*528}
    s_add_u32 s26, s26, {HL}
    v_add_u32 v6, s26, v6""")
    HF = 16
    for a in range(8):
        k(f"ds_read_b128 {vr(HF+4*a,4)}, v6 offset:{a*1056}")
    tr_lane_base(k, 7, 8, 1, 64, "std", False)
    k("v_add_u32 v7, s25, v7\ns_waitcnt vmcnt(0) lgkmcnt(0)")
    WF = 48
    for a in range(8):
        k(f"ds_read_b64_tr_b16 {vr(WF+4*a,2)}, v7 offset:{a*1024}")
        k(f"ds_read_b64_tr_b16 {vr(WF+4*a+2,2)}, v7 offset:{a*1024+256}")
        if a == 3:
            k("s_waitcnt lgkmcnt(0)")
    k(f"""s_lshl_b32 s26, s30, 16
    s_add_u32 s26, s26, s25
    s_add_u32 s26, s26, {hex(WS_H)}
    s_cmp_eq_u32 s31, 0
    s_cbranch_scc0 {k.lab('v')}""")
    ACC = 80
    for i in range(4):
        k(f"buffer_store_dwordx4 {vr(HF+4*i,4)}, v2, s[20:23], s26 offen offset:{i*1024}")
    k("s_waitcnt lgkmcnt(0)")
    for a in range(8):
        k(mfma(ACC, WF + 4 * a, HF + 4 * a, "0" if a == 0 else None))
    k(f"s_branch {k.lab('red')}")
    k.label("v")
    k("s_add_u32 s26, s26, 4096")
    for i in range(4):
        k(f"buffer_store_dwordx4 {vr(HF+16+4*i,4)}, v2, s[20:23], s26 offen offset:{i*1024}")
    k("s_waitcnt lgkmcnt(0)")
    for a in range(8):
        k(mfma(ACC, HF + 4 * a, WF + 4 * a, "0" if a == 0 else None))
    k.label("red")
    k(f"""v_lshlrev_b32 v6, 3, v1
    v_add_u32 v7, s25, v6
    s_nop 15""")
    for p in range(8):
        k(f"ds_write_b64 v7, {vr(ACC+2*p,2)} offset:{p*512}")
    k(f"""s_waitcnt lgkmcnt(0)
    s_barrier
    s_lshl_b32 s26, s3, 9
    v_add_u32 v7, s26, v6""")
    for w in range(8):
        k(f"ds_read_b64 {vr(48+2*w,2)}, v7 offset:{w*8192}")
    k("s_waitcnt lgkmcnt(0)")
    for w in range(1, 8):
        k(f"v_add_f32 v48, v48, v{48+2*w}\nv_add_f32 v49, v49, v{49+2*w}")
    k(f"""v_cvt_pk_bf16_f32 v8, v48, v49
    s_lshl_b32 s26, s30, 12
    s_lshl_b32 s27, s31, 11
    s_add_u32 s26, s26, s27
    s_lshr_b32 s27, s3, 2
    s_lshl_b32 s27, s27, 10
    s_add_u32 s26, s26, s27
    s_and_b32 s27, s3, 3
    s_lshl_b32 s27, s27, 2
    s_add_u32 s26, s26, s27
    s_add_u32 s26, s26, {hex(WS_KV)}
    buffer_store_dword v8, v2, s[20:23], s26 offen
    s_cmp_eq_u32 s31, 0
    s_cbranch_scc0 {k.lab('end')}
    v_lshlrev_b32 v9, 16, v8
    v_and_b32 v10, 0xffff0000, v8
    v_mul_f32 v9, v9, v9
    v_fmac_f32 v9, v10, v10
    v_and_b32 v5, 31, v1
    v_lshlrev_b32 v5, 2, v5
    v_add_u32 v5, {NRM}, v5
    ds_add_f32 v5, v9
    s_waitcnt lgkmcnt(0)
    s_barrier
    s_cmp_lg_u32 s3, 0
    s_cbranch_scc1 {k.lab('end')}
    ds_read_b32 v9, v5
    s_waitcnt lgkmcnt(0)""")
    wave_allreduce(k, "v_max_f32", [9], [10])
    k(f"""s_lshl_b32 s26, s30, 2
    s_add_u32 s26, s26, {hex(WS_KN)}
    v_mov_b32 v5, 0
    buffer_store_dword v9, v5, s[20:23], s26 offen""")
    return k


G_ACC, G_WF, G_AF = 16, 48, 80


def tile_map_4x8(k, s_mt, s_nt):
    k(f"""s_and_b32 s40, s2, 7
    s_lshr_b32 s41, s2, 3
    s_lshr_b32 s{s_mt}, s40, 1
    s_lshl_b32 s{s_mt}, s{s_mt}, 2
    s_and_b32 s42, s41, 3
    s_add_u32 s{s_mt}, s{s_mt}, s42
    s_and_b32 s{s_nt}, s40, 1
    s_lshl_b32 s{s_nt}, s{s_nt}, 3
    s_lshr_b32 s42, s41, 2
    s_add_u32 s{s_nt}, s{s_nt}, s42""")


def gemm64(k, nstage, korder, srdA, srdW, s_wave, s_nt, extra_last=None):
    RS = 2048
    sA, sW, sM, sC = 44, 45, 46, 47
    dma64_lane_off(k, 4, 5, 1, RS)
    k(f"""s_lshl_b32 s{sW}, s{s_wave}, 15
    s_lshl_b32 s48, s{s_nt}, 7
    s_add_u32 s{sW}, s{sW}, s48
    v_add_u32 v5, {8*RS-1024}, v4
    s_lshl_b32 s{sM}, s{s_wave}, 11
    s_mov_b32 s{sA}, 0""")

    def wdma():
        return [f"s_mov_b32 m0, s{sM}",
                f"s_add_u32 s{sM}, s{sM}, 8192",
                f"buffer_load_dwordx4 v4, {sr(srdW,4)}, s{sW} offen lds",
                f"s_and_b32 s{sM}, s{sM}, 0xffff",
                f"buffer_load_dwordx4 v5, {sr(srdW,4)}, s{sW} offen offset:1024 lds",
                f"s_add_u32 s{sW}, s{sW}, {64*RS}"]

    def aload(u, t):
        return f"buffer_load_dwordx4 {vr(G_AF+16*u+4*t,4)}, v2, {sr(srdA,4)}, s{sA} offen offset:{t*1024}"

    second = 1024 if korder == "perm" else 512

    def reads(slot, step):
        b = G_WF + 8 * step
        o = slot * 8192 + step * 2048
        return [f"ds_read_b64_tr_b16 {vr(b,2)}, v6 offset:{o}",
                f"ds_read_b64_tr_b16 {vr(b+2,2)}, v6 offset:{o+second}",
                f"ds_read_b64_tr_b16 {vr(b+4,2)}, v7 offset:{o}",
                f"ds_read_b64_tr_b16 {vr(b+6,2)}, v7 offset:{o+second}"]

    k("\n".join(wdma()))
    for u in range(4):
        k(aload(u, 0)); k(aload(u, 1))
        k("\n".join(wdma()))
        k(aload(u, 2)); k(aload(u, 3))
        k(f"s_add_u32 s{sA}, s{sA}, 4096")
    tr_lane_base(k, 6, 8, 1, 128, korder, True)
    k("v_xor_b32 v7, 64, v6")
    for i in range(32):
        k(f"v_mov_b32 v{G_ACC+i}, 0")
    k(f"s_mov_b32 s{sC}, {nstage//4}\ns_waitcnt vmcnt(24)\ns_barrier")
    k("\n".join(reads(0, 0) + reads(0, 1)))
    k.label("gl")
    if extra_last:
        k(f"s_cmp_eq_u32 s{sC}, 1\ns_cbranch_scc0 {k.lab('gx')}")
        extra_last()
        k.label("gx")
    for u in range(4):
        for t in range(4):
            if t == 2:
                k("s_waitcnt vmcnt(21) lgkmcnt(4)\ns_barrier")
                if u == 3:
                    k("v_xor_b32 v6, 0x8000, v6\nv_xor_b32 v7, 0x8000, v7")
            else:
                k("s_waitcnt vmcnt(23) lgkmcnt(4)")
            r = reads(u, t + 2) if t < 2 else reads((u + 1) & 3, t - 2)
            a = G_AF + 16 * u + 4 * t
            k(mfma(G_ACC, G_WF + 8 * t, a))
            k(r[0]); k(r[1])
            if t == 2:
                k("\n".join(wdma()))
            k(mfma(G_ACC + 16, G_WF + 8 * t + 4, a))
            k(r[2]); k(r[3])
            k(aload(u, t))
            if t == 3:
                k(f"s_add_u32 s{sA}, s{sA}, 4096")
    k(f"s_sub_u32 s{sC}, s{sC}, 1\ns_cmp_lg_u32 s{sC}, 0\ns_cbranch_scc1 {k.lab('gl')}")


def k_attn():
    k = Kern("attn", 256, 256, 65536, 256)
    k.exit_if_ge(256)
    k.ptr(4, "wq"); k.ptr(6, "ws")
    k("v_and_b32 v1, 63, v0\nv_lshlrev_b32 v2, 4, v1")
    k.wave_id(3, 3)
    tile_map_4x8(k, 30, 31)
    k(f"""s_lshl_b32 s32, s30, 2
    s_add_u32 s32, s32, s3
    s_lshl_b32 s33, s32, 16
    s_add_u32 s34, s33, {hex(WS_H)}
    s_waitcnt lgkmcnt(0)""")
    k.srd(12, 6, 65536, "s34"); k.srd(16, 4, 1024 * 2048); k.srd(20, 6, WS_END); k.srd(24, 6, 262144, WS_KV)
    QA, QB, NA, NB, SA, SB, PA, PB, OA, OB, LA, LB, KR, VR, ONE, IDX = \
        48, 56, 64, 80, 96, 112, 128, 136, 144, 160, 176, 180, 184, 216, 248, 252
    k(f"""v_lshlrev_b32 v3, 2, v1
    s_mov_b32 s35, {hex(WS_KN)}
    buffer_load_dword v253, v3, s[20:23], s35 offen
    s_lshr_b32 s35, s2, 3
    s_lshl_b32 s35, s35, 13
    s_lshl_b32 s36, s3, 11
    s_add_u32 s35, s35, s36
    v_lshlrev_b32 v3, 5, v1
    buffer_load_dword v254, v3, s[24:27], s35 offen""")
    gemm64(k, 16, "std", 12, 16, 3, 31)
    CS = LOG2E * 32 ** -0.5
    k("s_waitcnt vmcnt(0) lgkmcnt(0)\ns_nop 7")
    wave_allreduce(k, "v_max_f32", [253], [254])
    for hd, (Q, N) in enumerate(((QA, NA), (QB, NB))):
        a = G_ACC + 16 * hd
        for i in range(16):
            k(f"v_mul_f32 v{a+i}, {fx(CS)}, v{a+i}")
        for i in range(8):
            k(f"v_cvt_pk_bf16_f32 v{Q+i}, v{a+2*i}, v{a+2*i+1}")
        k(f"v_mul_f32 v9, v{a}, v{a}")
        for i in range(1, 16):
            k(f"v_fmac_f32 v9, v{a+i}, v{a+i}")
        half_allreduce(k, "v_add_f32", 9, 10)
        k(f"""v_mul_f32 v9, v9, v253
        v_sqrt_f32 v9, v9
        s_nop 0
        v_sub_f32 v9, {fx(50.0)}, v9""")
        for i in range(16):
            k(f"v_mov_b32 v{N+i}, v9")
    k(f"""v_bfe_u32 v9, v1, 2, 1
    v_cmp_eq_u32 vcc, 0, v9
    v_mov_b32 v10, 0x3f803f80
    v_and_b32 v9, 1, v1
    v_cndmask_b32 v{ONE}, 0, v10, vcc
    v_cndmask_b32 v{ONE+1}, 0, v10, vcc
    v_xor_b32 v{ONE+2}, v10, v{ONE}
    v_xor_b32 v{ONE+3}, v10, v{ONE}
    v_mul_u32_u24 v9, 0xaaaa, v9
    v_add_u32 v{IDX}, 0x4444, v9
    s_mov_b32 s38, 0""")
    k.label("att")
    sK = 36
    k(f"s_mov_b32 s{sK}, 0")

    def kload(slot, half, extra=0):
        return f"buffer_load_dwordx4 {vr(KR+8*slot+4*half,4)}, v2, s[24:27], s{sK} offen offset:{half*1024}"

    def vload(slot, half):
        return f"buffer_load_dwordx4 {vr(VR+8*slot+4*half,4)}, v2, s[24:27], s37 offen offset:{2048+half*1024}"

    k(kload(0, 0)); k(kload(0, 1))
    for j in range(3):
        k(f"s_mov_b32 s37, s{sK}\ns_add_u32 s{sK}, s{sK}, 4096")
        k(kload(j + 1, 0)); k(kload(j + 1, 1)); k(vload(j, 0)); k(vload(j, 1))
    k(f"s_mov_b32 s37, s{sK}\ns_add_u32 s{sK}, s{sK}, 4096")
    for i in range(32):
        k(f"v_mov_b32 v{OA+i}, 0")
    for i in range(8):
        k(f"v_mov_b32 v{LA+i}, 0\nv_mov_b32 v{PB+i}, 0\nv_mov_b32 v{VR+24+i}, 0")
    k("s_mov_b32 s39, 16\ns_waitcnt vmcnt(12)")
    k(mfma(SA, KR, QA, NA)); k(mfma(SA, KR + 4, QA + 4))
    k("s_nop 15")

    def phase(SX, PX, SY, PY, OY, LY, NY, QY, kslot, vslot, after):
        M = [mfma(SY, KR + 8 * kslot, QY, NY), mfma(SY, KR + 8 * kslot + 4, QY + 4),
             mfma(OY, VR + 8 * vslot, PY), mfma(OY, VR + 8 * vslot + 4, PY + 4),
             f"v_smfmac_f32_16x16x64_bf16 {vr(LY,4)}, {vr(ONE,4)}, {vr(PY,8)}, v{IDX}"]
        e = lambda i: (f"v_exp_f32 v{SX+i}, v{SX+i}", 8)
        c = lambda i: (f"v_cvt_pk_bf16_f32 v{PX+i}, v{SX+2*i}, v{SX+2*i+1}", 4)
        V = [e(0), e(1), e(2), c(0)]
        for i in range(1, 6):
            V += [e(2 * i + 1), e(2 * i + 2), c(i)]
        V += [e(13), e(14), e(15), c(6), c(7)]
        acc = 0; m = 0
        for ins, cost in V:
            if m < 5 and acc >= 32 * m - 4:
                k(M[m])
                for x in after[m]:
                    k(x)
                m += 1
            k(ins); acc += cost
        assert m == 5

    k.label("loop")
    for j in range(4):
        phase(SA, PA, SB, PB, OB, LB, NB, QB, j, (j + 3) & 3,
              [[], [], [kload(j, 0)], [kload(j, 1)], ["s_waitcnt vmcnt(10)"]])
        last = [f"s_mov_b32 s37, s{sK}"]
        phase(SB, PB, SA, PA, OA, LA, NA, QA, (j + 1) & 3, j,
              [[vload((j + 3) & 3, 0)], [vload((j + 3) & 3, 1)], last, [f"s_add_u32 s{sK}, s{sK}, 4096"],
               (["s_sub_u32 s39, s39, 1"] if j == 3 else [])])
    k(f"s_cmp_lg_u32 s39, 0\ns_cbranch_scc1 {k.lab('loop')}")
    k("s_nop 1")
    k(mfma(OB, VR + 24, PB)); k(mfma(OB, VR + 28, PB + 4))
    k(f"v_smfmac_f32_16x16x64_bf16 {vr(LB,4)}, {vr(ONE,4)}, {vr(PB,8)}, v{IDX}")
    k(f"""s_waitcnt vmcnt(0)
    s_nop 15
    v_add_f32 v9, v{LA}, v{LA+1}
    v_add_f32 v10, v{LB}, v{LB+1}
    s_cmp_lg_u32 s38, 0
    s_cbranch_scc1 {k.lab('fin')}
    v_min_f32 v11, v9, v10
    v_max_f32 v12, v9, v10
    v_cmp_nle_f32 vcc, {fx(2.0**-40)}, v11
    s_mov_b32 s40, {fx(2.0**100)}
    v_cmp_nge_f32 s[42:43], s40, v12
    s_nop 1
    s_or_b64 vcc, vcc, s[42:43]
    s_cbranch_vccz {k.lab('fin')}""")
    k(f"""s_mov_b32 s38, 1
    s_mov_b32 s{sK}, 0
    v_mov_b32 v9, 0xff800000
    v_mov_b32 v10, 0xff800000""")
    k.label("mx")
    k(kload(0, 0)); k(kload(0, 1))
    k("s_waitcnt vmcnt(0)")
    k(mfma(SA, KR, QA, "0")); k(mfma(SA, KR + 4, QA + 4))
    k(mfma(SB, KR, QB, "0")); k(mfma(SB, KR + 4, QB + 4))
    k("s_nop 15")
    for i in range(8):
        k(f"v_max3_f32 v9, v9, v{SA+2*i}, v{SA+2*i+1}")
    for i in range(8):
        k(f"v_max3_f32 v10, v10, v{SB+2*i}, v{SB+2*i+1}")
    k(f"s_add_u32 s{sK}, s{sK}, 4096\ns_cmp_lt_u32 s{sK}, 262144\ns_cbranch_scc1 {k.lab('mx')}")
    half_allreduce(k, "v_max_f32", 9, 11)
    half_allreduce(k, "v_max_f32", 10, 11)
    for i in range(16):
        k(f"v_sub_f32 v{NA+i}, 0, v9\nv_sub_f32 v{NB+i}, 0, v10")
    k(f"s_branch {k.lab('att')}")
    k.label("fin")
    k(f"""v_rcp_f32 v9, v9
    v_rcp_f32 v10, v10
    s_lshl_b32 s35, s31, 12
    s_add_u32 s35, s35, s33
    s_add_u32 s35, s35, {hex(WS_O)}""")
    for hd, O in enumerate((OA, OB)):
        for i in range(16):
            k(f"v_mul_f32 v{O+i}, v{O+i}, v{9+hd}")
        for i in range(8):
            k(f"v_cvt_pk_bf16_f32 v{SA+8*hd+i}, v{O+2*i}, v{O+2*i+1}")
        k(f"buffer_store_dwordx4 {vr(SA+8*hd,4)}, v2, s[20:23], s35 offen offset:{hd*2048}")
        k(f"buffer_store_dwordx4 {vr(SA+8*hd+4,4)}, v2, s[20:23], s35 offen offset:{hd*2048+1024}")
    return k


def k_oproj():
    XL = 65536
    k = Kern("oproj", 256, 256, XL + 4 * 5120, 208)
    k.exit_if_ge(256)
    k.ptr(4, "wo"); k.ptr(6, "ws"); k.ptr(8, "x")
    k("v_and_b32 v1, 63, v0\nv_lshlrev_b32 v2, 4, v1")
    k.wave_id(3, 3)
    tile_map_4x8(k, 30, 31)
    k(f"""s_lshl_b32 s32, s30, 2
    s_add_u32 s32, s32, s3
    s_lshl_b32 s33, s32, 16
    s_add_u32 s34, s33, {hex(WS_O)}
    s_mul_i32 s36, s3, 5120
    s_add_u32 s36, s36, {XL}
    s_waitcnt lgkmcnt(0)""")
    k.srd(12, 6, 65536, "s34"); k.srd(16, 4, 1024 * 2048); k.srd(20, 6, WS_END); k.srd(24, 8, 2048 * 2048)

    def extra():
        k(f"""v_lshrrev_b32 v9, 3, v1
        v_lshlrev_b32 v9, 11, v9
        v_lshrrev_b32 v10, 4, v1
        v_xor_b32 v10, v10, v1
        v_and_b32 v10, 7, v10
        v_lshl_add_u32 v9, v10, 4, v9
        v_xor_b32 v10, 64, v9
        v_add_u32 v10, {16384-1024}, v10
        s_lshl_b32 s35, s31, 7
        s_add_u32 s35, s35, s33
        s_add_u32 s37, s35, {32768-2048}
        s_mov_b32 m0, s36
        v_bfe_u32 v11, v1, 4, 1
        buffer_load_dwordx4 v9, s[24:27], s35 offen lds
        buffer_load_dwordx4 v10, s[24:27], s35 offen offset:1024 lds
        buffer_load_dwordx4 v9, s[24:27], s37 offen offset:2048 lds
        buffer_load_dwordx4 v10, s[24:27], s37 offen offset:3072 lds
        v_lshlrev_b32 v11, 13, v11
        v_and_b32 v12, 15, v1
        v_lshl_add_u32 v11, v12, 4, v11
        s_add_u32 s37, s36, 4096
        s_mov_b32 m0, s37
        s_lshl_b32 s35, s31, 8
        s_add_u32 s35, s35, {WS_MODF + 2*4096}
        buffer_load_dwordx4 v11, s[20:23], s35 offen lds""")

    gemm64(k, 16, "perm", 12, 16, 3, 31, extra)
    XR, GA, CB, T = 80, 96, 128, 160
    k(f"""v_and_b32 v9, 31, v1
    v_lshlrev_b32 v10, 7, v9
    v_bfe_u32 v11, v1, 1, 3
    v_lshl_add_u32 v10, v11, 4, v10
    v_lshrrev_b32 v11, 5, v1
    v_lshl_add_u32 v10, v11, 3, v10
    v_add_u32 v10, s36, v10
    v_lshlrev_b32 v12, 4, v11
    v_add_u32 v12, s36, v12
    s_waitcnt vmcnt(0) lgkmcnt(0)""")
    for c in range(8):
        k(f"v_xor_b32 v13, {c*16}, v10\nds_read_b64 {vr(XR+2*c,2)}, v13")
    for c in range(4):
        k(f"ds_read_b128 {vr(GA+4*c,4)}, v12 offset:{4096+c*32}")
    k("s_waitcnt lgkmcnt(4)")
    for c in range(4, 8):
        k(f"ds_read_b128 {vr(GA+4*c,4)}, v12 offset:{4096+c*32}")
    for c in range(4):
        k(f"ds_read_b128 {vr(CB+4*c,4)}, v12 offset:{4096+256+c*32}")
    for i in range(16):
        k(f"v_lshlrev_b32 v{T+2*i}, 16, v{XR+i}\nv_and_b32 v{T+2*i+1}, 0xffff0000, v{XR+i}")
    k("s_waitcnt lgkmcnt(4)")
    for c in range(4, 8):
        k(f"ds_read_b128 {vr(CB+4*c,4)}, v12 offset:{4096+256+c*32}")
    for i in range(16):
        k(f"v_pk_fma_f32 {vr(G_ACC+2*i,2)}, {vr(G_ACC+2*i,2)}, {vr(GA+2*i,2)}, {vr(T+2*i,2)}")
    k(f"""s_lshl_b32 s35, s31, 12
    s_add_u32 s35, s35, s33
    s_add_u32 s37, s35, {hex(WS_X2P)}
    s_add_u32 s35, s35, {hex(WS_X2)}
    s_waitcnt lgkmcnt(0)""")
    for i in range(16):
        k(f"v_pk_mul_f32 {vr(T+2*i,2)}, {vr(G_ACC+2*i,2)}, {vr(CB+2*i,2)}")
    for i in range(16):
        k(f"v_cvt_pk_bf16_f32 v{192+i}, v{T+2*i}, v{T+2*i+1}")
        if i & 3 == 3:
            k(f"buffer_store_dwordx4 {vr(192+i-3,4)}, v2, s[20:23], s37 offen offset:{(i>>2)*1024}")
    for i in range(16):
        k(f"v_cvt_pk_bf16_f32 v{XR+i}, v{G_ACC+2*i}, v{G_ACC+2*i+1}")
        if i & 3 == 3:
            k(f"buffer_store_dwordx4 {vr(XR+i-3,4)}, v2, s[20:23], s35 offen offset:{(i>>2)*1024}")
    k(f"v_pk_add_f32 v[10:11], {vr(G_ACC,2)}, {vr(G_ACC+2,2)}")
    for i in range(2, 16):
        k(f"v_pk_add_f32 v[10:11], v[10:11], {vr(G_ACC+2*i,2)}")
    k("v_add_f32 v10, v10, v11")
    half_allreduce(k, "v_add_f32", 10, 11)
    k(f"v_mul_f32 v10, {fx(1/64)}, v10\nv_mov_b32 v12, 0\nv_mov_b32 v13, 0")
    for i in range(16):
        k(f"v_pk_add_f32 {vr(T+2*i,2)}, {vr(G_ACC+2*i,2)}, v[10:11] op_sel_hi:[1,0] neg_lo:[0,1] neg_hi:[0,1]")
    for i in range(16):
        k(f"v_pk_fma_f32 v[12:13], {vr(T+2*i,2)}, {vr(T+2*i,2)}, v[12:13]")
    k("v_add_f32 v11, v12, v13")
    half_allreduce(k, "v_add_f32", 11, 12)
    k(f"""s_lshl_b32 s35, s31, 14
    s_lshl_b32 s37, s32, 8
    s_add_u32 s35, s35, s37
    s_add_u32 s35, s35, {hex(WS_ST2)}
    v_lshlrev_b32 v9, 3, v9
    buffer_store_dwordx2 v[10:11], v9, s[20:23], s35 offen""")
    return k


def combine_stats(k, S, counts, total, vmean, vrstd, t):
    k(f"v_mul_f32 v{vmean}, {fx(counts[0]/total)}, v{S}")
    for i in range(1, 8):
        k(f"v_fmamk_f32 v{vmean}, v{S+2*i}, {fx(counts[i]/total)}, v{vmean}")
    half_allreduce(k, "v_add_f32", vmean, t)
    k(f"v_mov_b32 v{vrstd}, 0")
    for i in range(8):
        k(f"""v_sub_f32 v{t}, v{S+2*i}, v{vmean}
        v_mul_f32 v{t}, v{t}, v{t}
        v_fmamk_f32 v{t}, v{t}, {fx(float(counts[i]))}, v{S+2*i+1}
        v_add_f32 v{vrstd}, v{vrstd}, v{t}""")
    half_allreduce(k, "v_add_f32", vrstd, t)
    k(f"""v_mov_b32 v{t}, {fx(1e-5)}
    v_fmamk_f32 v{vrstd}, v{vrstd}, {fx(1/total)}, v{t}
    v_rsq_f32 v{vrstd}, v{vrstd}
    s_nop 0""")


def k_win():
    SLOT, R = 28672, 5
    UL = SLOT * R
    k = Kern("win", 256, 256, UL + 2048, 256)
    k.exit_if_ge(256)
    k.ptr(4, "w_in"); k.ptr(6, "ws")
    k("v_and_b32 v1, 63, v0\nv_lshlrev_b32 v2, 4, v1")
    k.wave_id(3, 3)
    k(f"""s_and_b32 s40, s2, 7
    s_lshr_b32 s41, s2, 3
    s_lshr_b32 s30, s40, 2
    s_lshl_b32 s30, s30, 3
    s_and_b32 s42, s41, 7
    s_add_u32 s30, s30, s42
    s_and_b32 s31, s40, 3
    s_lshl_b32 s31, s31, 2
    s_lshr_b32 s42, s41, 3
    s_add_u32 s31, s31, s42
    s_lshl_b32 s32, s30, 2
    s_add_u32 s32, s32, s3
    s_lshl_b32 s33, s32, 16
    s_add_u32 s34, s33, {hex(WS_X2P)}""")
    k("""s_lshr_b32 s42, s31, 1
    s_lshl_b32 s50, s42, 2
    s_mul_i32 s51, s42, 3
    s_add_u32 s51, s51, 32
    s_and_b32 s53, s31, 1
    s_cmp_eq_u32 s53, 0
    s_cselect_b32 s52, 4, 3
    s_cselect_b32 s42, s50, s51
    s_cselect_b32 s51, s51, s50
    s_mov_b32 s50, s42
    s_waitcnt lgkmcnt(0)""")
    k.srd(12, 6, 65536, "s34"); k.srd(16, 4, 1024 * 7168); k.srd(20, 6, WS_END)
    ACC, WF, AF, DM, ST = 16, 128, 156, 188, 196
    sA, sW, sM, sC, sL = 44, 45, 46, 47, 48
    k("""s_lshl_b32 s54, s50, 6
    s_add_u32 s54, s54, 3584
    s_sub_u32 s55, s51, s52
    s_lshl_b32 s55, s55, 6
    s_lshl_b32 s56, s52, 2
    s_mul_i32 s42, s3, 448
    v_mov_b32 v9, s54
    v_mov_b32 v10, s55""")
    for i in range(7):
        k(f"""s_add_u32 s43, s42, {64*i}
        v_add_u32 v4, s43, v1
        v_mul_u32_u24 v5, 2341, v4
        v_lshrrev_b32 v5, 16, v5
        v_mul_u32_u24 v6, 28, v5
        v_sub_u32 v6, v4, v6
        v_cmp_gt_u32 vcc, s56, v6
        v_mul_u32_u24 v5, 7168, v5
        v_lshl_add_u32 v5, v6, 4, v5
        v_cndmask_b32 v6, v10, v9, vcc
        v_add_u32 v5, v5, v6
        v_subrev_u32 v{DM+i}, {(i&3)*1024}, v5""")
    k(f"""s_mul_i32 s49, s3, 7168
    s_mov_b32 s{sM}, s49
    s_mov_b32 s{sW}, 0
    s_mov_b32 s{sA}, 0""")

    def wdma(i):
        pre, post = [], []
        if i == 0:
            pre = [f"s_mov_b32 m0, s{sM}", f"s_add_u32 s57, s{sM}, 4096"]
        if i == 4:
            pre = ["s_mov_b32 m0, s57", f"s_add_u32 s{sM}, s{sM}, {SLOT}"]
        if i == 5:
            post = [f"s_cmp_ge_u32 s{sM}, {SLOT*R}", f"s_cselect_b32 s{sM}, s49, s{sM}"]
        if i == 6:
            post = [f"s_add_u32 s{sW}, s{sW}, {64*7168}"]
        return pre, f"buffer_load_dwordx4 v{DM+i}, s[16:19], s{sW} offen offset:{(i&3)*1024} lds", post

    def aload(u, t):
        return f"buffer_load_dwordx4 {vr(AF+16*u+4*t,4)}, v2, s[12:15], s{sA} offen offset:{t*1024}"

    def wstage():
        for i in range(7):
            pre, ins, post = wdma(i)
            k("\n".join(pre + [ins] + post))

    k(f"""v_lshrrev_b32 v5, 1, v1
    v_cmp_gt_u32 vcc, s56, v5
    s_and_b32 s42, s3, 1
    s_lshl_b32 s43, s42, 10
    s_add_u32 s43, s43, {UL}
    v_cndmask_b32 v6, v10, v9, vcc
    v_lshl_add_u32 v6, v6, 1, v2
    s_mov_b32 m0, s43
    s_mul_i32 s42, s42, {3584*4}
    s_add_u32 s42, s42, {WS_UT}
    buffer_load_dwordx4 v6, s[20:23], s42 offen lds""")
    wstage(); k(aload(0, 0)); k(aload(0, 1)); k(aload(0, 2))
    wstage(); k(aload(0, 3)); k(f"s_add_u32 s{sA}, s{sA}, 4096")
    k(aload(1, 0)); k(aload(1, 1)); k(aload(1, 2))
    wstage()
    tr_lane_base(k, 7, 8, 1, 448, "perm", False)
    for i in range(112):
        k(f"v_mov_b32 v{ACC+i}, 0")
    for i in range(28):
        k(f"v_mov_b32 v{WF+i}, 0")
    for i in range(4):
        k(f"v_mov_b32 v{AF+28+i}, 0")
    k(f"s_mov_b32 s{sC}, 8\ns_mov_b32 s{sL}, 0\nv_mov_b32 v6, v7")

    def step(areg, rstep, dmas, tail):
        for j in range(7):
            k("s_waitcnt lgkmcnt(12)")
            k(mfma(ACC + 16 * j, WF + 4 * j, areg))
            post = []
            if j in dmas:
                pre, ins, post = wdma(dmas[j])
                k("\n".join(pre + [ins]))
            o = rstep * 16 * 448 + j * 64
            k(f"ds_read_b64_tr_b16 {vr(WF+4*j,2)}, v6 offset:{o}")
            k(f"ds_read_b64_tr_b16 {vr(WF+4*j+2,2)}, v6 offset:{o+8*448}")
            if post:
                k("\n".join(post))
        k("\n".join(tail))

    k.label("gl")
    k(f"s_cmp_eq_u32 s{sC}, 1\ns_cbranch_scc0 {k.lab('gx')}")
    k(f"""v_and_b32 v9, 31, v1
    v_lshlrev_b32 v9, 3, v9
    v_lshrrev_b32 v10, 5, v1
    v_lshl_add_u32 v9, v10, 17, v9
    s_lshl_b32 s42, s32, 8
    s_add_u32 s42, s42, {hex(WS_ST2)}""")
    for i in range(8):
        k(f"buffer_load_dwordx2 {vr(ST+2*i,2)}, v9, s[20:23], s42 offen\ns_add_u32 s42, s42, 16384")
    k.label("gx")
    for u in range(2):
        k("s_waitcnt vmcnt(19)\ns_barrier")
        step(AF + 16 * (u ^ 1) + 12, 0, {1: 0, 4: 1}, [aload(u ^ 1, 3), f"s_add_u32 s{sA}, s{sA}, 4096"])
        k("s_waitcnt vmcnt(19)")
        step(AF + 16 * u + 0, 1, {1: 2, 4: 3}, [aload(u, 0)])
        k("s_waitcnt vmcnt(19)")
        step(AF + 16 * u + 4, 2, {1: 4, 4: 5}, [aload(u, 1)])
        k("s_waitcnt vmcnt(20)")
        step(AF + 16 * u + 8, 3, {1: 6}, [aload(u, 2),
                                          f"s_add_u32 s{sL}, s{sL}, {SLOT}",
                                          f"s_cmp_ge_u32 s{sL}, {SLOT*R}",
                                          f"s_cselect_b32 s{sL}, 0, s{sL}",
                                          f"v_add_u32 v6, s{sL}, v7"])
    k(f"s_sub_u32 s{sC}, s{sC}, 1\ns_cmp_lg_u32 s{sC}, 0\ns_cbranch_scc1 {k.lab('gl')}")
    k("s_waitcnt vmcnt(0) lgkmcnt(0)")
    for j in range(7):
        k(mfma(ACC + 16 * j, WF + 4 * j, AF + 28))
    MU, RS_ = 10, 12
    combine_stats(k, ST, [64] * 8, 1024, 10, 12, 14)
    k(f"""v_mul_f32 v10, v10, v12
    v_sub_f32 v10, 0, v10
    v_lshrrev_b32 v9, 5, v1
    v_lshlrev_b32 v9, 4, v9
    v_add_u32 v9, {UL}, v9
    s_mov_b32 s60, {fx(-2*LOG2E*0.7978845608028654*0.044715)}
    s_mov_b32 s61, s60
    v_mov_b32 v4, {fx(-2*LOG2E*0.7978845608028654)}
    v_mov_b32 v5, v4""")
    U, T, E = 128, 144, 160

    def gelu(j):
        a = ACC + 16 * j
        for c in range(4):
            k(f"ds_read_b128 {vr(U+4*c,4)}, v9 offset:{j*128+c*32}")
        for c in range(4):
            k(f"ds_read_b128 {vr(T+4*c,4)}, v9 offset:{1024+j*128+c*32}")
        k("s_waitcnt lgkmcnt(0)")
        for p in range(8):
            k(f"v_pk_fma_f32 {vr(T+2*p,2)}, {vr(U+2*p,2)}, v[10:11], {vr(T+2*p,2)} op_sel_hi:[1,0,1]")
        for p in range(8):
            k(f"v_pk_fma_f32 {vr(a+2*p,2)}, {vr(a+2*p,2)}, v[12:13], {vr(T+2*p,2)} op_sel_hi:[1,0,1]")
        for p in range(8):
            k(f"v_pk_mul_f32 {vr(E+2*p,2)}, {vr(a+2*p,2)}, {vr(a+2*p,2)}")
        for p in range(8):
            k(f"v_pk_fma_f32 {vr(E+2*p,2)}, {vr(E+2*p,2)}, s[60:61], v[4:5]")
        for p in range(8):
            k(f"v_pk_mul_f32 {vr(E+2*p,2)}, {vr(E+2*p,2)}, {vr(a+2*p,2)}")
        for i in range(16):
            k(f"v_exp_f32 v{E+i}, v{E+i}")
        for p in range(8):
            k(f"v_pk_add_f32 {vr(E+2*p,2)}, {vr(E+2*p,2)}, 1.0 op_sel_hi:[1,0]")
        for i in range(16):
            k(f"v_rcp_f32 v{E+i}, v{E+i}")
        for p in range(8):
            k(f"v_pk_mul_f32 {vr(a+2*p,2)}, {vr(a+2*p,2)}, {vr(E+2*p,2)}")

    for j in range(4):
        gelu(j)
    k(f"v_pk_add_f32 v[14:15], {vr(ACC,2)}, {vr(ACC+2,2)}")
    for p in range(2, 24):
        k(f"v_pk_add_f32 v[14:15], v[14:15], {vr(ACC+2*p,2)}")
    k(f"s_cmp_eq_u32 s53, 0\ns_cbranch_scc0 {k.lab('s1')}")
    for p in range(24, 32):
        k(f"v_pk_add_f32 v[14:15], v[14:15], {vr(ACC+2*p,2)}")
    k.label("s1")
    k(f"s_mov_b32 s62, {fx(1/128)}\ns_mov_b32 s63, {fx(1/96)}\ns_cselect_b32 s42, s62, s63")
    k("v_add_f32 v14, v14, v15")
    half_allreduce(k, "v_add_f32", 14, 15)
    k("v_mul_f32 v14, s42, v14\nv_mov_b32 v6, 0\nv_mov_b32 v7, 0")

    def m2(p0, p1):
        for p in range(p0, p1):
            e = E + 2 * (p & 7)
            k(f"v_pk_add_f32 {vr(e,2)}, {vr(ACC+2*p,2)}, v[14:15] op_sel_hi:[1,0] neg_lo:[0,1] neg_hi:[0,1]")
            k(f"v_pk_fma_f32 v[6:7], {vr(e,2)}, {vr(e,2)}, v[6:7]")

    m2(0, 24)
    k(f"s_cmp_eq_u32 s53, 0\ns_cbranch_scc0 {k.lab('s2')}")
    m2(24, 32)
    k.label("s2")
    k("v_add_f32 v15, v6, v7")
    half_allreduce(k, "v_add_f32", 15, 6)
    k(f"""v_and_b32 v15, 0xfffffffe, v15
    v_and_b32 v8, 31, v1
    v_lshlrev_b32 v8, 3, v8
    s_lshl_b32 s42, s32, 8
    s_add_u32 s58, s42, {hex(WS_ST3)}
    s_lshl_b32 s43, s31, 14
    s_add_u32 s42, s58, s43
    buffer_store_dwordx2 v[14:15], v8, s[20:23], s42 offen sc0 sc1""")
    k(f"""s_mul_i32 s42, s32, {112*1024}
    s_lshl_b32 s43, s55, 5
    s_add_u32 s42, s42, s43
    s_add_u32 s59, s42, {hex(WS_Z1 + 3*2048)}""")
    PK = 176

    def store_z1(j):
        a = ACC + 16 * j
        pk = PK + 8 * (j & 1)
        for p in range(8):
            k(f"v_cvt_pk_bf16_f32 v{pk+p}, v{a+2*p}, v{a+2*p+1}")
        k(f"buffer_store_dwordx4 {vr(pk,4)}, v2, s[20:23], s59 offen")
        k(f"buffer_store_dwordx4 {vr(pk+4,4)}, v2, s[20:23], s59 offen offset:1024")

    k(f"s_cmp_eq_u32 s53, 0\ns_cbranch_scc1 {k.lab('s3')}")
    store_z1(3)
    k.label("s3")
    for j in range(4, 7):
        gelu(j)
        k("s_add_u32 s59, s59, 2048")
        store_z1(j)
    k(f"""v_lshrrev_b32 v9, 5, v1
    v_lshl_add_u32 v9, v9, 17, v8
    s_mov_b32 s64, 0x40000""")
    k.label("poll")
    k("s_mov_b32 s42, s58")
    for i in range(8):
        k(f"buffer_load_dwordx2 {vr(ST+2*i,2)}, v9, s[20:23], s42 offen sc0 sc1\ns_add_u32 s42, s42, 16384")
    k(f"s_waitcnt vmcnt(0)\nv_or_b32 v6, v{ST+1}, v{ST+3}")
    for i in range(2, 8):
        k(f"v_or_b32 v6, v6, v{ST+2*i+1}")
    k(f"""v_and_b32 v6, 1, v6
    v_cmp_ne_u32 vcc, 0, v6
    s_sub_u32 s64, s64, 1
    s_cbranch_scc1 {k.lab('pend')}
    s_cbranch_vccnz {k.lab('poll')}""")
    k.label("pend")
    combine_stats(k, ST, [128, 96] * 4, 1792, 10, 12, 14)
    k(f"""v_mul_f32 v10, v10, v12
    v_sub_f32 v10, 0, v10
    v_bfe_u32 v9, v1, 2, 3
    v_lshlrev_b32 v9, 8, v9
    v_lshrrev_b32 v6, 5, v1
    v_lshl_add_u32 v9, v6, 6, v9
    v_and_b32 v6, 3, v1
    v_lshl_add_u32 v9, v6, 4, v9
    s_mul_i32 s42, s32, {56*2048}
    s_lshl_b32 s43, s50, 11
    s_add_u32 s42, s42, s43
    s_add_u32 s59, s42, {hex(WS_Z2)}""")

    def store_z2(j):
        a = ACC + 16 * j
        pk = PK + 8 * (j & 1)
        for p in range(8):
            k(f"v_pk_fma_f32 {vr(a+2*p,2)}, {vr(a+2*p,2)}, v[12:13], v[10:11] op_sel_hi:[1,0,0]")
        for p in range(8):
            k(f"v_cvt_pk_bf16_f32 v{pk+p}, v{a+2*p}, v{a+2*p+1}")
        k(f"buffer_store_dwordx4 {vr(pk,4)}, v9, s[20:23], s59 offen")
        k(f"buffer_store_dwordx4 {vr(pk+4,4)}, v9, s[20:23], s59 offen offset:128")
        k("s_add_u32 s59, s59, 2048")

    for j in range(3):
        store_z2(j)
    k(f"s_cmp_eq_u32 s53, 0\ns_cbranch_scc0 {k.lab('end')}")
    store_z2(3)
    return k


def k_wsp():
    k = Kern("wsp", 224, 256, 131072, 160)
    k.exit_if_ge(224)
    k.ptr(4, "w_sp"); k.ptr(6, "ws"); k.ptr(8, "b_sp")
    k("v_and_b32 v1, 63, v0\nv_lshlrev_b32 v2, 4, v1")
    k.wave_id(3, 3)
    k("""s_and_b32 s40, s2, 7
    s_lshr_b32 s41, s2, 3
    s_lshr_b32 s30, s40, 1
    s_lshl_b32 s30, s30, 2
    s_and_b32 s42, s41, 3
    s_add_u32 s30, s30, s42
    s_and_b32 s31, s40, 1
    s_mul_i32 s31, s31, 7
    s_lshr_b32 s42, s41, 2
    s_add_u32 s31, s31, s42
    s_and_b32 s32, s3, 1
    s_lshr_b32 s33, s3, 1
    s_waitcnt lgkmcnt(0)""")
    k.srd(12, 4, 2048 * 4096); k.srd(16, 6, 0x700000, WS_Z2); k.srd(20, 6, WS_END); k.srd(24, 8, 4096)
    ACC, FR, DM, RA, RZ, Z1, BI = 16, 80, 4, 8, 12, 112, 144
    sS, sZ, sM, sC = 44, 45, 46, 47
    k(f"""v_lshrrev_b32 v13, 3, v1
    v_lshlrev_b32 v13, 12, v13
    v_lshrrev_b32 v14, 4, v1
    v_xor_b32 v14, v14, v1
    v_and_b32 v14, 7, v14
    v_lshl_add_u32 v{DM}, v14, 4, v13
    v_xor_b32 v13, 64, v{DM}
    v_add_u32 v{DM+1}, {32768-1024}, v13
    v_add_u32 v{DM+2}, {65536-2048}, v{DM}
    v_add_u32 v{DM+3}, {98304-3072}, v13
    s_lshl_b32 s{sS}, s30, 19
    s_lshl_b32 s42, s3, 17
    s_add_u32 s{sS}, s{sS}, s42
    s_mul_i32 s{sZ}, s33, {56*2048}
    s_lshl_b32 s42, s31, 13
    s_add_u32 s{sZ}, s{sZ}, s42
    s_lshl_b32 s42, s32, 12
    s_add_u32 s{sZ}, s{sZ}, s42
    s_lshl_b32 s{sM}, s3, 12
    s_mov_b32 s49, 0""")

    def dma(i):
        pre, post = [], []
        if i == 0:
            pre = [f"s_mov_b32 m0, s{sM}", f"s_add_u32 s48, s{sM}, 16384"]
        if i == 4:
            pre = ["s_mov_b32 m0, s48", f"s_add_u32 s{sM}, s{sM}, 32768"]
        if i < 4:
            ins = f"buffer_load_dwordx4 v{DM+i}, s[12:15], s{sS} offen offset:{i*1024} lds"
        else:
            ins = f"buffer_load_dwordx4 v2, s[16:19], s{sZ} offen offset:{(i-4)*1024} lds"
        if i == 3:
            post = [f"s_add_u32 s{sS}, s{sS}, 128", "s_add_u32 s49, s49, 1"]
        if i == 5:
            post = [f"s_and_b32 s{sM}, s{sM}, 0x1ffff"]
        if i == 6:
            post = ["s_cmp_lt_u32 s49, 32", "s_cselect_b32 s14, s14, 0"]
        if i == 7:
            post = [f"s_add_u32 s{sZ}, s{sZ}, {2*56*2048}"]
        return pre, ins, post

    for s in range(3):
        for i in range(8):
            pre, ins, post = dma(i)
            k("\n".join(pre + [ins] + post))
    k(f"""v_and_b32 v13, 31, v1
    v_lshlrev_b32 v14, 7, v13
    v_bfe_u32 v15, v1, 1, 3
    v_lshrrev_b32 v3, 5, v1
    v_xor_b32 v15, v15, v3
    v_lshl_add_u32 v14, v15, 4, v14
    s_lshl_b32 s42, s32, 13
    v_add_u32 v{RA}, s42, v14
    v_xor_b32 v{RA+1}, 32, v{RA}
    v_xor_b32 v{RA+2}, 64, v{RA}
    v_xor_b32 v{RA+3}, 96, v{RA}
    v_lshlrev_b32 v14, 9, v3
    v_bfe_u32 v15, v1, 4, 1
    v_lshl_add_u32 v14, v15, 7, v14
    v_and_b32 v15, 1, v1
    v_lshl_add_u32 v14, v15, 6, v14
    v_bfe_u32 v15, v1, 2, 2
    v_lshl_add_u32 v14, v15, 4, v14
    v_bfe_u32 v15, v1, 1, 1
    v_lshl_add_u32 v14, v15, 3, v14
    s_lshl_b32 s42, s33, 12
    s_add_u32 s42, s42, 16384
    v_add_u32 v{RZ}, s42, v14""")
    for i in range(64):
        k(f"v_mov_b32 v{ACC+i}, 0")
    for i in range(16):
        k(f"v_mov_b32 v{FR+16+i}, 0")
    k(f"s_mov_b32 s{sC}, 16")

    def reads(slot, a):
        b = FR + 16 * (a & 1)
        o = slot * 32768
        oz = o + (a >> 1) * 8192 + (a & 1) * 1024
        return [f"ds_read_b128 {vr(b,4)}, v{RA+a} offset:{o}",
                f"ds_read_b64_tr_b16 {vr(b+8,2)}, v{RZ} offset:{oz}",
                f"ds_read_b64_tr_b16 {vr(b+10,2)}, v{RZ} offset:{oz+256}",
                f"ds_read_b128 {vr(b+4,4)}, v{RA+a} offset:{o+4096}",
                f"ds_read_b64_tr_b16 {vr(b+12,2)}, v{RZ} offset:{oz+2048}",
                f"ds_read_b64_tr_b16 {vr(b+14,2)}, v{RZ} offset:{oz+2048+256}"]

    def step(a, rd, dmas):
        b = FR + 16 * (a & 1)
        M = [mfma(ACC, b + 8, b), mfma(ACC + 16, b + 8, b + 4), mfma(ACC + 32, b + 12, b), mfma(ACC + 48, b + 12, b + 4)]
        k(M[0]); k("\n".join(rd[0:3]))
        k(M[1]); k("\n".join(rd[3:6]))
        for m in (2, 3):
            k(M[m])
            if dmas:
                pre, ins, post = dma(dmas[m - 2])
                k("\n".join(pre + [ins] + post))

    k.label("gl")
    k(f"s_cmp_eq_u32 s{sC}, 1\ns_cbranch_scc0 {k.lab('gx')}")
    k(f"""s_lshl_b32 s34, s30, 2
    s_lshl_b32 s42, s32, 1
    s_add_u32 s34, s34, s42
    s_mul_i32 s35, s34, {112*1024}
    s_lshl_b32 s42, s31, 13
    s_add_u32 s35, s35, s42
    s_lshl_b32 s42, s33, 12
    s_add_u32 s35, s35, s42
    s_add_u32 s36, s35, {hex(WS_Z1)}
    s_add_u32 s37, s36, {112*1024}
    s_lshl_b32 s38, s34, 6
    v_lshlrev_b32 v13, 1, v13""")
    for tt in range(2):
        for f in range(4):
            k(f"buffer_load_dwordx4 {vr(Z1+16*tt+4*f,4)}, v2, s[20:23], s{36+tt} offen offset:{f*1024}")
        k(f"buffer_load_ushort v{BI+tt}, v13, s[24:27], s38 offen offset:{tt*64}")
    k.label("gx")
    for u in range(2):
        k("s_waitcnt vmcnt(16) lgkmcnt(0)\ns_barrier")
        step(3, reads(u, 0), [0, 1])
        for a in range(3):
            k("s_waitcnt lgkmcnt(0)")
            step(a, reads(u, a + 1), [2 * a + 2, 2 * a + 3])
    for r in (RA, RA + 1, RA + 2, RA + 3, RZ):
        k(f"v_xor_b32 v{r}, 0x10000, v{r}")
    k(f"s_sub_u32 s{sC}, s{sC}, 1\ns_cmp_lg_u32 s{sC}, 0\ns_cbranch_scc1 {k.lab('gl')}")
    k("s_waitcnt vmcnt(0) lgkmcnt(0)")
    step(3, [""] * 6, None)
    k(f"""s_add_u32 s36, s35, {hex(WS_Y)}
    s_add_u32 s37, s36, {112*1024}
    v_lshlrev_b32 v4, 16, v{BI}
    v_lshlrev_b32 v6, 16, v{BI+1}
    s_nop 7""")
    for ft in range(2):
        for tt in range(2):
            a = ACC + 32 * ft + 16 * tt
            z = Z1 + 16 * tt + 8 * ft
            for p in range(8):
                k(f"v_lshlrev_b32 v{FR+2*p}, 16, v{z+p}\nv_and_b32 v{FR+2*p+1}, 0xffff0000, v{z+p}")
            for p in range(8):
                k(f"v_pk_add_f32 {vr(a+2*p,2)}, {vr(a+2*p,2)}, {vr(4+2*tt,2)} op_sel_hi:[1,0]")
            for p in range(8):
                k(f"v_pk_mul_f32 {vr(a+2*p,2)}, {vr(a+2*p,2)}, {vr(FR+2*p,2)}")
            for p in range(8):
                k(f"v_cvt_pk_bf16_f32 v{z+p}, v{a+2*p}, v{a+2*p+1}")
            k(f"buffer_store_dwordx4 {vr(z,4)}, v2, s[20:23], s{36+tt} offen offset:{ft*2048}")
            k(f"buffer_store_dwordx4 {vr(z+4,4)}, v2, s[20:23], s{36+tt} offen offset:{ft*2048+1024}")
    return k


def k_wout():
    XL = 65536
    k = Kern("wout", 256, 256, XL + 4096, 192)
    k.exit_if_ge(256)
    k.ptr(4, "w_out"); k.ptr(6, "ws"); k.ptr(8, "out")
    k("v_and_b32 v1, 63, v0\nv_lshlrev_b32 v2, 4, v1")
    k.wave_id(3, 3)
    tile_map_4x8(k, 30, 31)
    k(f"""s_lshl_b32 s32, s30, 2
    s_add_u32 s32, s32, s3
    s_lshl_b32 s33, s32, 16
    s_mul_i32 s34, s32, {112*1024}
    s_add_u32 s34, s34, {hex(WS_Y)}
    s_lshl_b32 s36, s3, 10
    s_add_u32 s36, s36, {XL}
    s_waitcnt lgkmcnt(0)""")
    k.srd(12, 6, 112 * 1024, "s34"); k.srd(16, 4, 1792 * 2048); k.srd(20, 6, WS_END); k.srd(24, 8, 2048 * 2048)
    XR, GB, T = 144, 80, 160

    def extra():
        k(f"""s_lshl_b32 s35, s31, 12
        s_add_u32 s35, s35, s33
        s_add_u32 s35, s35, {hex(WS_X2)}
        s_mov_b32 m0, s36""")
        for i in range(4):
            k(f"buffer_load_dwordx4 {vr(XR+4*i,4)}, v2, s[20:23], s35 offen offset:{i*1024}")
        k(f"""v_and_b32 v11, 255, v2
        s_lshl_b32 s35, s31, 8
        s_add_u32 s35, s35, {WS_MODF + 5*4096}
        buffer_load_dwordx4 v11, s[20:23], s35 offen lds""")

    gemm64(k, 28, "perm", 12, 16, 3, 31, extra)
    k(f"""v_lshrrev_b32 v11, 5, v1
    v_lshlrev_b32 v12, 4, v11
    v_and_b32 v9, 31, v1
    v_lshl_add_u32 v9, v9, 11, v12
    v_add_u32 v12, s36, v12
    s_lshl_b32 s35, s31, 7
    s_add_u32 s35, s35, s33
    s_waitcnt vmcnt(0) lgkmcnt(0)""")
    for c in range(8):
        k(f"ds_read_b128 {vr(GB+4*c,4)}, v12 offset:{c*32}")
    for i in range(16):
        k(f"v_lshlrev_b32 v{T+2*i}, 16, v{XR+i}\nv_and_b32 v{T+2*i+1}, 0xffff0000, v{XR+i}")
    k("s_waitcnt lgkmcnt(0)")
    for i in range(16):
        k(f"v_pk_fma_f32 {vr(G_ACC+2*i,2)}, {vr(G_ACC+2*i,2)}, {vr(GB+2*i,2)}, {vr(T+2*i,2)}")
    for i in range(16):
        k(f"v_cvt_pk_bf16_f32 v{XR+i}, v{G_ACC+2*i}, v{G_ACC+2*i+1}")
    k("s_nop 1")
    for q in range(4):
        b = XR + 4 * q
        k(f"v_permlane32_swap_b32 v{b}, v{b+2}\nv_permlane32_swap_b32 v{b+1}, v{b+3}")
        k(f"buffer_store_dwordx4 {vr(b,4)}, v9, s[24:27], s35 offen offset:{q*32}")
    return k


def build():
    ks = [k_mod(), k_lnkv(), k_attn(), k_oproj(), k_win(), k_wsp(), k_wout()]
    head = open(f"cdna_kernels/{NAME}.s.ref").read().split("; Override launch geometry")[0]
    out = head + "\n".join(k.launch() for k in ks) + "\n"
    out += '.amdgcn_target "amdgcn-amd-amdhsa--gfx950"\n.text\n'
    out += "".join(k.text() for k in ks)
    out += '.section .rodata,"a"\n' + "".join(k.desc() for k in ks)
    return out


if __name__ == "__main__":
    path = sys.argv[1] if len(sys.argv) > 1 else f"cdna_kernels/{NAME}.s"
    open(path, "w").write(build())
    print("wrote", path)
```

```python
from g_base import *
from g_mid import gemm64


def combine_stats(k, S, counts, total, vmean, vrstd, t):
    k(f"v_mul_f32 v{vmean}, {fx(counts[0]/total)}, v{S}")
    for i in range(1, 8):
        k(f"v_fmamk_f32 v{vmean}, v{S+2*i}, {fx(counts[i]/total)}, v{vmean}")
    half_allreduce(k, "v_add_f32", vmean, t)
    k(f"v_mov_b32 v{vrstd}, 0")
    for i in range(8):
        k(f"""v_sub_f32 v{t}, v{S+2*i}, v{vmean}
        v_mul_f32 v{t}, v{t}, v{t}
        v_fmamk_f32 v{t}, v{t}, {fx(float(counts[i]))}, v{S+2*i+1}
        v_add_f32 v{vrstd}, v{vrstd}, v{t}""")
    half_allreduce(k, "v_add_f32", vrstd, t)
    k(f"""v_mov_b32 v{t}, {fx(1e-5)}
    v_fmamk_f32 v{vrstd}, v{vrstd}, {fx(1/total)}, v{t}
    v_rsq_f32 v{vrstd}, v{vrstd}
    s_nop 0""")


def k_win():
    SLOT, R = 28672, 5
    UL = SLOT * R
    k = Kern("win", 256, 256, UL + 2048, 256)
    k.exit_if_ge(256)
    k.ptr(4, "w_in"); k.ptr(6, "ws")
    k("v_and_b32 v1, 63, v0\nv_lshlrev_b32 v2, 4, v1")
    k.wave_id(3, 3)
    k(f"""s_and_b32 s40, s2, 7
    s_lshr_b32 s41, s2, 3
    s_lshr_b32 s30, s40, 2
    s_lshl_b32 s30, s30, 3
    s_and_b32 s42, s41, 7
    s_add_u32 s30, s30, s42
    s_and_b32 s31, s40, 3
    s_lshl_b32 s31, s31, 2
    s_lshr_b32 s42, s41, 3
    s_add_u32 s31, s31, s42
    s_lshl_b32 s32, s30, 2
    s_add_u32 s32, s32, s3
    s_lshl_b32 s33, s32, 16
    s_add_u32 s34, s33, {hex(WS_X2P)}""")
    k("""s_lshr_b32 s42, s31, 1
    s_lshl_b32 s50, s42, 2
    s_mul_i32 s51, s42, 3
    s_add_u32 s51, s51, 32
    s_and_b32 s53, s31, 1
    s_cmp_eq_u32 s53, 0
    s_cselect_b32 s52, 4, 3
    s_cselect_b32 s42, s50, s51
    s_cselect_b32 s51, s51, s50
    s_mov_b32 s50, s42
    s_waitcnt lgkmcnt(0)""")
    k.srd(12, 6, 65536, "s34"); k.srd(16, 4, 1024 * 7168); k.srd(20, 6, WS_END)
    ACC, WF, AF, DM, ST = 16, 128, 156, 188, 196
    sA, sW, sM, sC, sL = 44, 45, 46, 47, 48
    k("""s_lshl_b32 s54, s50, 6
    s_add_u32 s54, s54, 3584
    s_sub_u32 s55, s51, s52
    s_lshl_b32 s55, s55, 6
    s_lshl_b32 s56, s52, 2
    s_mul_i32 s42, s3, 448
    v_mov_b32 v9, s54
    v_mov_b32 v10, s55""")
    for i in range(7):
        k(f"""s_add_u32 s43, s42, {64*i}
        v_add_u32 v4, s43, v1
        v_mul_u32_u24 v5, 2341, v4
        v_lshrrev_b32 v5, 16, v5
        v_mul_u32_u24 v6, 28, v5
        v_sub_u32 v6, v4, v6
        v_cmp_gt_u32 vcc, s56, v6
        v_mul_u32_u24 v5, 7168, v5
        v_lshl_add_u32 v5, v6, 4, v5
        v_cndmask_b32 v6, v10, v9, vcc
        v_add_u32 v5, v5, v6
        v_subrev_u32 v{DM+i}, {(i&3)*1024}, v5""")
    k(f"""s_mul_i32 s49, s3, 7168
    s_mov_b32 s{sM}, s49""")
    sT, sCol, sSig, sAn, sAq = 35, 36, 37, 38, 39
    sigma_init(k, 30, 31, sT, sCol, sSig, opt("colw", 0))
    nxt = sigma_next(16, sT, sCol, sSig, 65, 66, opt("colw", 0))
    k(f"s_mul_i32 s{sW}, s{sSig}, {64*7168}")

    def wdma(i):
        pre, post = [], []
        if i == 0:
            pre = [f"s_mov_b32 m0, s{sM}", f"s_add_u32 s57, s{sM}, 4096"]
        if i == 4:
            pre = ["s_mov_b32 m0, s57", f"s_add_u32 s{sM}, s{sM}, {SLOT}"]
        if i == 5:
            post = [f"s_cmp_ge_u32 s{sM}, {SLOT*R}", f"s_cselect_b32 s{sM}, s49, s{sM}"]
        if i == 0:
            post = [f"s_lshl_b32 s{sAq}, s{sSig}, 12"]
        if i == 1:
            post = nxt[:3]
        if i == 2:
            post = nxt[3:5]
        if i == 3:
            post = nxt[5:]
        if i == 6:
            post = [f"s_mul_i32 s{sW}, s{sSig}, {64*7168}"]
        return pre, f"buffer_load_dwordx4 v{DM+i}, s[16:19], s{sW} offen offset:{(i&3)*1024} lds", post

    def aload(u, t):
        return f"buffer_load_dwordx4 {vr(AF+16*u+4*t,4)}, v2, s[12:15], s{sA} offen offset:{t*1024}"

    def wstage():
        for i in range(7):
            pre, ins, post = wdma(i)
            k("\n".join(pre + [ins] + post))

    UP = 212
    k(f"""v_lshrrev_b32 v5, 1, v1
    v_cmp_gt_u32 vcc, s56, v5
    s_and_b32 s42, s3, 1
    s_lshl_b32 s43, s42, 10
    s_add_u32 s43, s43, {UL}
    v_cndmask_b32 v6, v10, v9, vcc
    v_lshl_add_u32 v6, v6, 1, v2
    v_add_u32 v11, s43, v2
    s_mul_i32 s42, s42, {3584*4}
    s_add_u32 s42, s42, {WS_UT}""")
    for p in range(4):
        k(f"buffer_load_dwordx4 {vr(UP+4*p,4)}, v6, s[20:23], s42 offen\ns_add_u32 s42, s42, {2*3584*4}")
    wstage(); k(f"s_mov_b32 s{sA}, s{sAq}")
    k(aload(0, 0)); k(aload(0, 1)); k(aload(0, 2))
    wstage(); k(aload(0, 3)); k(f"s_mov_b32 s{sA}, s{sAq}")
    k(aload(1, 0)); k(aload(1, 1)); k(aload(1, 2))
    wstage(); k(f"s_mov_b32 s{sAn}, s{sAq}")
    tr_lane_base(k, 7, 8, 1, 448, "perm", False)
    for i in range(112):
        k(f"v_mov_b32 v{ACC+i}, 0")
    for i in range(28):
        k(f"v_mov_b32 v{WF+i}, 0")
    for i in range(4):
        k(f"v_mov_b32 v{AF+28+i}, 0")
    k(f"s_mov_b32 s{sC}, 8\ns_mov_b32 s{sL}, 0\nv_mov_b32 v6, v7\ns_waitcnt vmcnt(28)")
    for a, b in ((0, 4), (2, 6), (8, 12), (10, 14), (0, 8), (2, 10)):
        k(f"v_pk_add_f32 {vr(UP+a,2)}, {vr(UP+a,2)}, {vr(UP+b,2)}")
    k(f"ds_write_b128 v11, {vr(UP,4)}\ns_waitcnt lgkmcnt(0)")
    k.stamp(0)
    if STAMP:
        k("s_waitcnt vmcnt(19)")
    k.stamp(1)

    def step(areg, rstep, dmas, tail):
        for j in range(7):
            k("s_waitcnt lgkmcnt(12)")
            k(mfma(ACC + 16 * j, WF + 4 * j, areg))
            post = []
            if j in dmas:
                pre, ins, post = wdma(dmas[j])
                k("\n".join(pre + [ins]))
            o = rstep * 16 * 448 + j * 64
            k(f"ds_read_b64_tr_b16 {vr(WF+4*j,2)}, v6 offset:{o}")
            k(f"ds_read_b64_tr_b16 {vr(WF+4*j+2,2)}, v6 offset:{o+8*448}")
            if post:
                k("\n".join(post))
        k("\n".join(tail))

    k.label("gl")
    k(f"s_cmp_eq_u32 s{sC}, 1\ns_cbranch_scc0 {k.lab('gx')}")
    k(f"""v_and_b32 v9, 31, v1
    v_lshlrev_b32 v9, 3, v9
    v_lshrrev_b32 v10, 5, v1
    v_lshl_add_u32 v9, v10, 17, v9
    s_lshl_b32 s42, s32, 8
    s_add_u32 s42, s42, {hex(WS_ST2)}""")
    for i in range(8):
        k(f"buffer_load_dwordx2 {vr(ST+2*i,2)}, v9, s[20:23], s42 offen\ns_add_u32 s42, s42, 16384")
    k.label("gx")
    for u in range(2):
        k("s_waitcnt vmcnt(19)\ns_barrier")
        step(AF + 16 * (u ^ 1) + 12, 0, {1: 0, 4: 1}, [aload(u ^ 1, 3), f"s_mov_b32 s{sA}, s{sAn}", f"s_mov_b32 s{sAn}, s{sAq}"])
        k("s_waitcnt vmcnt(19)")
        step(AF + 16 * u + 0, 1, {1: 2, 4: 3}, [aload(u, 0)])
        k("s_waitcnt vmcnt(19)")
        step(AF + 16 * u + 4, 2, {1: 4, 4: 5}, [aload(u, 1)])
        k("s_waitcnt vmcnt(20)")
        step(AF + 16 * u + 8, 3, {1: 6}, [aload(u, 2),
                                          f"s_add_u32 s{sL}, s{sL}, {SLOT}",
                                          f"s_cmp_ge_u32 s{sL}, {SLOT*R}",
                                          f"s_cselect_b32 s{sL}, 0, s{sL}",
                                          f"v_add_u32 v6, s{sL}, v7"])
    k(f"s_sub_u32 s{sC}, s{sC}, 1\ns_cmp_lg_u32 s{sC}, 0\ns_cbranch_scc1 {k.lab('gl')}")
    k.stamp(2)
    k("s_waitcnt vmcnt(0) lgkmcnt(0)")
    for j in range(7):
        k(mfma(ACC + 16 * j, WF + 4 * j, AF + 28))
    MU, RS_ = 10, 12
    combine_stats(k, ST, [64] * 8, 1024, 10, 12, 14)
    k(f"""v_mul_f32 v10, v10, v12
    v_sub_f32 v10, 0, v10
    v_lshrrev_b32 v9, 5, v1
    v_lshlrev_b32 v9, 4, v9
    v_add_u32 v9, {UL}, v9
    s_mov_b32 s60, {fx(-2*LOG2E*0.7978845608028654*0.044715)}
    s_mov_b32 s61, s60
    v_mov_b32 v4, {fx(-2*LOG2E*0.7978845608028654)}
    v_mov_b32 v5, v4""")
    U, T, E = 128, 144, 160

    def gelu(j):
        a = ACC + 16 * j
        for c in range(4):
            k(f"ds_read_b128 {vr(U+4*c,4)}, v9 offset:{j*128+c*32}")
        for c in range(4):
            k(f"ds_read_b128 {vr(T+4*c,4)}, v9 offset:{1024+j*128+c*32}")
        k("s_waitcnt lgkmcnt(0)")
        for p in range(8):
            k(f"v_pk_fma_f32 {vr(T+2*p,2)}, {vr(U+2*p,2)}, v[10:11], {vr(T+2*p,2)} op_sel_hi:[1,0,1]")
        for p in range(8):
            k(f"v_pk_fma_f32 {vr(a+2*p,2)}, {vr(a+2*p,2)}, v[12:13], {vr(T+2*p,2)} op_sel_hi:[1,0,1]")
        for p in range(8):
            k(f"v_pk_mul_f32 {vr(E+2*p,2)}, {vr(a+2*p,2)}, {vr(a+2*p,2)}")
        for p in range(8):
            k(f"v_pk_fma_f32 {vr(E+2*p,2)}, {vr(E+2*p,2)}, s[60:61], v[4:5]")
        for p in range(8):
            k(f"v_pk_mul_f32 {vr(E+2*p,2)}, {vr(E+2*p,2)}, {vr(a+2*p,2)}")
        for i in range(16):
            k(f"v_exp_f32 v{E+i}, v{E+i}")
        for p in range(8):
            k(f"v_pk_add_f32 {vr(E+2*p,2)}, {vr(E+2*p,2)}, 1.0 op_sel_hi:[1,0]")
        for i in range(16):
            k(f"v_rcp_f32 v{E+i}, v{E+i}")
        for p in range(8):
            k(f"v_pk_mul_f32 {vr(a+2*p,2)}, {vr(a+2*p,2)}, {vr(E+2*p,2)}")

    for j in range(4):
        gelu(j)
    k(f"v_pk_add_f32 v[14:15], {vr(ACC,2)}, {vr(ACC+2,2)}")
    for p in range(2, 24):
        k(f"v_pk_add_f32 v[14:15], v[14:15], {vr(ACC+2*p,2)}")
    k(f"s_cmp_eq_u32 s53, 0\ns_cbranch_scc0 {k.lab('s1')}")
    for p in range(24, 32):
        k(f"v_pk_add_f32 v[14:15], v[14:15], {vr(ACC+2*p,2)}")
    k.label("s1")
    k(f"s_mov_b32 s62, {fx(1/128)}\ns_mov_b32 s63, {fx(1/96)}\ns_cselect_b32 s42, s62, s63")
    k("v_add_f32 v14, v14, v15")
    half_allreduce(k, "v_add_f32", 14, 15)
    k("v_mul_f32 v14, s42, v14\nv_mov_b32 v6, 0\nv_mov_b32 v7, 0")

    def m2(p0, p1):
        for p in range(p0, p1):
            e = E + 2 * (p & 7)
            k(f"v_pk_add_f32 {vr(e,2)}, {vr(ACC+2*p,2)}, v[14:15] op_sel_hi:[1,0] neg_lo:[0,1] neg_hi:[0,1]")
            k(f"v_pk_fma_f32 v[6:7], {vr(e,2)}, {vr(e,2)}, v[6:7]")

    m2(0, 24)
    k(f"s_cmp_eq_u32 s53, 0\ns_cbranch_scc0 {k.lab('s2')}")
    m2(24, 32)
    k.label("s2")
    k("v_add_f32 v15, v6, v7")
    half_allreduce(k, "v_add_f32", 15, 6)
    k(f"""v_and_b32 v15, 0xfffffffe, v15
    v_and_b32 v8, 31, v1
    v_lshlrev_b32 v8, 3, v8
    s_lshl_b32 s42, s32, 8
    s_add_u32 s58, s42, {hex(WS_ST3)}
    s_lshl_b32 s43, s31, 14
    s_add_u32 s42, s58, s43
    buffer_store_dwordx2 v[14:15], v8, s[20:23], s42 offen sc0 sc1""")
    k.stamp(3)
    k(f"""s_mul_i32 s42, s32, {112*1024}
    s_lshl_b32 s43, s55, 5
    s_add_u32 s42, s42, s43
    s_add_u32 s59, s42, {hex(WS_Z1 + 3*2048)}""")
    PK = 176

    def store_z1(j):
        a = ACC + 16 * j
        pk = PK + 8 * (j & 1)
        for p in range(8):
            k(f"v_cvt_pk_bf16_f32 v{pk+p}, v{a+2*p}, v{a+2*p+1}")
        k(f"buffer_store_dwordx4 {vr(pk,4)}, v2, s[20:23], s59 offen")
        k(f"buffer_store_dwordx4 {vr(pk+4,4)}, v2, s[20:23], s59 offen offset:1024")

    k(f"s_cmp_eq_u32 s53, 0\ns_cbranch_scc1 {k.lab('s3')}")
    store_z1(3)
    k.label("s3")
    for j in range(4, 7):
        gelu(j)
        k("s_add_u32 s59, s59, 2048")
        store_z1(j)
    k(f"""v_lshrrev_b32 v9, 5, v1
    v_lshl_add_u32 v9, v9, 17, v8
    s_mov_b32 s64, 0x40000""")
    k.stamp(4)
    k.label("poll")
    k("s_mov_b32 s42, s58")
    for i in range(8):
        k(f"buffer_load_dwordx2 {vr(ST+2*i,2)}, v9, s[20:23], s42 offen sc0 sc1\ns_add_u32 s42, s42, 16384")
    k(f"s_waitcnt vmcnt(0)\nv_or_b32 v6, v{ST+1}, v{ST+3}")
    for i in range(2, 8):
        k(f"v_or_b32 v6, v6, v{ST+2*i+1}")
    k(f"""v_and_b32 v6, 1, v6
    v_cmp_ne_u32 vcc, 0, v6
    s_sub_u32 s64, s64, 1
    s_cbranch_scc1 {k.lab('pend')}
    s_cbranch_vccnz {k.lab('poll')}""")
    k.label("pend")
    k.stamp(5)
    combine_stats(k, ST, [128, 96] * 4, 1792, 10, 12, 14)
    k(f"""v_mul_f32 v10, v10, v12
    v_sub_f32 v10, 0, v10
    v_bfe_u32 v9, v1, 2, 3
    v_lshlrev_b32 v9, 8, v9
    v_lshrrev_b32 v6, 5, v1
    v_lshl_add_u32 v9, v6, 6, v9
    v_and_b32 v6, 3, v1
    v_lshl_add_u32 v9, v6, 4, v9
    s_mul_i32 s42, s32, {56*2048}
    s_lshl_b32 s43, s50, 11
    s_add_u32 s42, s42, s43
    s_add_u32 s59, s42, {hex(WS_Z2)}""")

    def store_z2(j):
        a = ACC + 16 * j
        pk = PK + 8 * (j & 1)
        for p in range(8):
            k(f"v_pk_fma_f32 {vr(a+2*p,2)}, {vr(a+2*p,2)}, v[12:13], v[10:11] op_sel_hi:[1,0,0]")
        for p in range(8):
            k(f"v_cvt_pk_bf16_f32 v{pk+p}, v{a+2*p}, v{a+2*p+1}")
        k(f"buffer_store_dwordx4 {vr(pk,4)}, v9, s[20:23], s59 offen")
        k(f"buffer_store_dwordx4 {vr(pk+4,4)}, v9, s[20:23], s59 offen offset:128")
        k("s_add_u32 s59, s59, 2048")

    for j in range(3):
        store_z2(j)
    k(f"s_cmp_eq_u32 s53, 0\ns_cbranch_scc0 {k.lab('end')}")
    store_z2(3)
    return k


def k_wsp():
    k = Kern("wsp", 224, 256, 131072, 160)
    k.exit_if_ge(224)
    k.ptr(4, "w_sp"); k.ptr(6, "ws"); k.ptr(8, "b_sp")
    k("v_and_b32 v1, 63, v0\nv_lshlrev_b32 v2, 4, v1")
    k.wave_id(3, 3)
    k("""s_and_b32 s40, s2, 7
    s_lshr_b32 s41, s2, 3
    s_lshr_b32 s30, s40, 1
    s_lshl_b32 s30, s30, 2
    s_and_b32 s42, s41, 3
    s_add_u32 s30, s30, s42
    s_and_b32 s31, s40, 1
    s_mul_i32 s31, s31, 7
    s_lshr_b32 s42, s41, 2
    s_add_u32 s31, s31, s42
    s_and_b32 s32, s3, 1
    s_lshr_b32 s33, s3, 1
    s_waitcnt lgkmcnt(0)""")
    if opt("same", 0):
        k("s_and_b32 s30, s30, 1\ns_and_b32 s31, s31, 1")
    k.srd(12, 4, 2048 * 4096); k.srd(16, 6, 0x700000, WS_Z2); k.srd(20, 6, WS_END); k.srd(24, 8, 4096)
    ACC, FR, DM, RA, RZ, Z1, BI = 16, 80, 4, 8, 12, 112, 144
    sS, sZ, sM, sC = 44, 45, 46, 47
    k(f"""v_lshrrev_b32 v13, 3, v1
    v_lshlrev_b32 v13, 12, v13
    v_lshrrev_b32 v14, 4, v1
    v_xor_b32 v14, v14, v1
    v_and_b32 v14, 7, v14
    v_lshl_add_u32 v{DM}, v14, 4, v13
    v_xor_b32 v13, 64, v{DM}
    v_add_u32 v{DM+1}, {32768-1024}, v13
    v_add_u32 v{DM+2}, {65536-2048}, v{DM}
    v_add_u32 v{DM+3}, {98304-3072}, v13
    s_lshl_b32 s{sS}, s30, 19
    s_lshl_b32 s42, s3, 17
    s_add_u32 s{sS}, s{sS}, s42
    s_mul_i32 s{sZ}, s33, {56*2048}
    s_lshl_b32 s42, s31, 13
    s_add_u32 s{sZ}, s{sZ}, s42
    s_lshl_b32 s42, s32, 12
    s_add_u32 s{sZ}, s{sZ}, s42
    s_lshl_b32 s{sM}, s3, 12
    s_mov_b32 s49, s{sS}
    s_mov_b32 s50, s{sZ}""")
    sT, sCol, sSig = 51, 52, 53
    sigma_init(k, 30, 31, sT, sCol, sSig, opt("cols", 0))
    nxt = sigma_next(32, sT, sCol, sSig, 54, 55, opt("cols", 0))
    setS = [f"s_lshl_b32 s{sS}, s{sSig}, 7", f"s_add_u32 s{sS}, s{sS}, s49"]
    setZ = [f"s_mul_i32 s{sZ}, s{sSig}, {2*56*2048}", f"s_add_u32 s{sZ}, s{sZ}, s50"]
    k("\n".join(setS + setZ))

    def dma(i):
        pre, post = [], []
        if i == 0:
            pre = [f"s_mov_b32 m0, s{sM}", f"s_add_u32 s48, s{sM}, 16384"]
        if i == 4:
            pre = ["s_mov_b32 m0, s48", f"s_add_u32 s{sM}, s{sM}, 32768"]
        if i < 4:
            ins = f"buffer_load_dwordx4 v{DM+i}, s[12:15], s{sS} offen offset:{i*1024} lds"
        else:
            ins = f"buffer_load_dwordx4 v2, s[16:19], s{sZ} offen offset:{(i-4)*1024} lds"
        if i == 1:
            post = nxt[:3]
        if i == 2:
            post = nxt[3:5]
        if i == 3:
            post = nxt[5:]
        if i == 5:
            post = [f"s_and_b32 s{sM}, s{sM}, 0x1ffff"] + setS
        if i == 6:
            post = [f"s_cmp_lt_u32 s{sSig}, 32", "s_cselect_b32 s14, s14, 0"]
        if i == 7:
            post = setZ
        return pre, ins, post

    for s in range(3):
        for i in range(8):
            pre, ins, post = dma(i)
            k("\n".join(pre + [ins] + post))
    k(f"""v_and_b32 v13, 31, v1
    v_lshlrev_b32 v14, 7, v13
    v_bfe_u32 v15, v1, 1, 3
    v_lshrrev_b32 v3, 5, v1
    v_xor_b32 v15, v15, v3
    v_lshl_add_u32 v14, v15, 4, v14
    s_lshl_b32 s42, s32, 13
    v_add_u32 v{RA}, s42, v14
    v_xor_b32 v{RA+1}, 32, v{RA}
    v_xor_b32 v{RA+2}, 64, v{RA}
    v_xor_b32 v{RA+3}, 96, v{RA}
    v_lshlrev_b32 v14, 9, v3
    v_bfe_u32 v15, v1, 4, 1
    v_lshl_add_u32 v14, v15, 7, v14
    v_and_b32 v15, 1, v1
    v_lshl_add_u32 v14, v15, 6, v14
    v_bfe_u32 v15, v1, 2, 2
    v_lshl_add_u32 v14, v15, 4, v14
    v_bfe_u32 v15, v1, 1, 1
    v_lshl_add_u32 v14, v15, 3, v14
    s_lshl_b32 s42, s33, 12
    s_add_u32 s42, s42, 16384
    v_add_u32 v{RZ}, s42, v14""")
    for i in range(64):
        k(f"v_mov_b32 v{ACC+i}, 0")
    for i in range(16):
        k(f"v_mov_b32 v{FR+16+i}, 0")
    k(f"s_mov_b32 s{sC}, 16")
    k.stamp(0)
    if STAMP:
        k("s_waitcnt vmcnt(16)")
    k.stamp(1)

    def reads(slot, a):
        b = FR + 16 * (a & 1)
        o = slot * 32768
        oz = o + (a >> 1) * 8192 + (a & 1) * 1024
        return [f"ds_read_b128 {vr(b,4)}, v{RA+a} offset:{o}",
                f"ds_read_b64_tr_b16 {vr(b+8,2)}, v{RZ} offset:{oz}",
                f"ds_read_b64_tr_b16 {vr(b+10,2)}, v{RZ} offset:{oz+256}",
                f"ds_read_b128 {vr(b+4,4)}, v{RA+a} offset:{o+4096}",
                f"ds_read_b64_tr_b16 {vr(b+12,2)}, v{RZ} offset:{oz+2048}",
                f"ds_read_b64_tr_b16 {vr(b+14,2)}, v{RZ} offset:{oz+2048+256}"]

    def step(a, rd, dmas):
        b = FR + 16 * (a & 1)
        M = [mfma(ACC, b + 8, b), mfma(ACC + 16, b + 8, b + 4), mfma(ACC + 32, b + 12, b), mfma(ACC + 48, b + 12, b + 4)]
        k(M[0]); k("\n".join(rd[0:3]))
        k(M[1]); k("\n".join(rd[3:6]))
        for m in (2, 3):
            k(M[m])
            if dmas:
                pre, ins, post = dma(dmas[m - 2])
                k("\n".join(pre + [ins] + post))

    k.label("gl")
    k(f"s_cmp_eq_u32 s{sC}, 1\ns_cbranch_scc0 {k.lab('gx')}")
    k(f"""s_lshl_b32 s34, s30, 2
    s_lshl_b32 s42, s32, 1
    s_add_u32 s34, s34, s42
    s_mul_i32 s35, s34, {112*1024}
    s_lshl_b32 s42, s31, 13
    s_add_u32 s35, s35, s42
    s_lshl_b32 s42, s33, 12
    s_add_u32 s35, s35, s42
    s_add_u32 s36, s35, {hex(WS_Z1)}
    s_add_u32 s37, s36, {112*1024}
    s_lshl_b32 s38, s34, 6
    v_lshlrev_b32 v13, 1, v13""")
    for tt in range(2):
        for f in range(4):
            k(f"buffer_load_dwordx4 {vr(Z1+16*tt+4*f,4)}, v2, s[20:23], s{36+tt} offen offset:{f*1024}")
        k(f"buffer_load_ushort v{BI+tt}, v13, s[24:27], s38 offen offset:{tt*64}")
    k.label("gx")
    for u in range(2):
        k("s_waitcnt vmcnt(16) lgkmcnt(0)\ns_barrier")
        step(3, reads(u, 0), [0, 1])
        for a in range(3):
            k("s_waitcnt lgkmcnt(0)")
            step(a, reads(u, a + 1), [2 * a + 2, 2 * a + 3])
    for r in (RA, RA + 1, RA + 2, RA + 3, RZ):
        k(f"v_xor_b32 v{r}, 0x10000, v{r}")
    k(f"s_sub_u32 s{sC}, s{sC}, 1\ns_cmp_lg_u32 s{sC}, 0\ns_cbranch_scc1 {k.lab('gl')}")
    k.stamp(2)
    k("s_waitcnt vmcnt(0) lgkmcnt(0)")
    step(3, [""] * 6, None)
    k(f"""s_add_u32 s36, s35, {hex(WS_Y)}
    s_add_u32 s37, s36, {112*1024}
    v_lshlrev_b32 v4, 16, v{BI}
    v_lshlrev_b32 v6, 16, v{BI+1}
    s_nop 7""")
    for ft in range(2):
        for tt in range(2):
            a = ACC + 32 * ft + 16 * tt
            z = Z1 + 16 * tt + 8 * ft
            for p in range(8):
                k(f"v_lshlrev_b32 v{FR+2*p}, 16, v{z+p}\nv_and_b32 v{FR+2*p+1}, 0xffff0000, v{z+p}")
            for p in range(8):
                k(f"v_pk_add_f32 {vr(a+2*p,2)}, {vr(a+2*p,2)}, {vr(4+2*tt,2)} op_sel_hi:[1,0]")
            for p in range(8):
                k(f"v_pk_mul_f32 {vr(a+2*p,2)}, {vr(a+2*p,2)}, {vr(FR+2*p,2)}")
            for p in range(8):
                k(f"v_cvt_pk_bf16_f32 v{z+p}, v{a+2*p}, v{a+2*p+1}")
            k(f"buffer_store_dwordx4 {vr(z,4)}, v2, s[20:23], s{36+tt} offen offset:{ft*2048}")
            k(f"buffer_store_dwordx4 {vr(z+4,4)}, v2, s[20:23], s{36+tt} offen offset:{ft*2048+1024}")
    return k


def k_wout():
    XL = 65536
    k = Kern("wout", 256, 256, 82944, 192)
    k.exit_if_ge(256)
    k.ptr(4, "w_out"); k.ptr(6, "ws"); k.ptr(8, "out")
    k("v_and_b32 v1, 63, v0\nv_lshlrev_b32 v2, 4, v1")
    k.wave_id(3, 3)
    tile_map_4x8(k, 30, 31)
    k(f"""s_lshl_b32 s32, s30, 2
    s_add_u32 s32, s32, s3
    s_lshl_b32 s33, s32, 16
    s_mul_i32 s34, s32, {112*1024}
    s_add_u32 s34, s34, {hex(WS_Y)}
    s_lshl_b32 s36, s3, 10
    s_add_u32 s36, s36, {XL}
    s_waitcnt lgkmcnt(0)""")
    k.srd(12, 6, 112 * 1024, "s34"); k.srd(16, 4, 1792 * 2048); k.srd(20, 6, WS_END); k.srd(24, 8, 2048 * 2048)
    XR, GB, T = 144, 80, 160

    def extra():
        k(f"""s_lshl_b32 s35, s31, 12
        s_add_u32 s35, s35, s33
        s_add_u32 s35, s35, {hex(WS_X2)}
        s_mov_b32 m0, s36""")
        for i in range(4):
            k.vm(f"buffer_load_dwordx4 {vr(XR+4*i,4)}, v2, s[20:23], s35 offen offset:{i*1024}")
        k(f"""v_and_b32 v11, 255, v2
        s_lshl_b32 s35, s31, 8
        s_add_u32 s35, s35, {WS_MODF + 5*4096}""")
        k.vm("buffer_load_dwordx4 v11, s[20:23], s35 offen lds")

    gemm64(k, 28, "perm", 12, 16, 3, 30, 31, [extra], color=opt("colu", 1))
    k(f"""v_lshrrev_b32 v11, 5, v1
    v_lshlrev_b32 v12, 4, v11
    v_and_b32 v9, 31, v1
    v_lshl_add_u32 v9, v9, 11, v12
    v_add_u32 v12, s36, v12
    s_lshl_b32 s35, s31, 7
    s_add_u32 s35, s35, s33
    s_waitcnt vmcnt(0) lgkmcnt(0)""")
    for c in range(8):
        k(f"ds_read_b128 {vr(GB+4*c,4)}, v12 offset:{c*32}")
    for i in range(16):
        k(f"v_lshlrev_b32 v{T+2*i}, 16, v{XR+i}\nv_and_b32 v{T+2*i+1}, 0xffff0000, v{XR+i}")
    k("s_waitcnt lgkmcnt(0)")
    for i in range(16):
        k(f"v_pk_fma_f32 {vr(G_ACC+2*i,2)}, {vr(G_ACC+2*i,2)}, {vr(GB+2*i,2)}, {vr(T+2*i,2)}")
    for i in range(16):
        k(f"v_cvt_pk_bf16_f32 v{XR+i}, v{G_ACC+2*i}, v{G_ACC+2*i+1}")
    k("s_nop 1")
    for q in range(4):
        b = XR + 4 * q
        k(f"v_permlane32_swap_b32 v{b}, v{b+2}\nv_permlane32_swap_b32 v{b+1}, v{b+3}")
        k(f"buffer_store_dwordx4 {vr(b,4)}, v9, s[24:27], s35 offen offset:{q*32}")
    return k
```

```python
import sys, struct, os

STAMP = os.environ.get('STAMP', '0') == '1'
WS_DBG = 0x4000000

NAME = "adaLN_cond__grouped_kv_mqa__mixer_gmlp__prompt"

KA = dict(x=0, wq=8, wk=16, wv=24, wo=32, bx=40, w_in=48, w_sp=56, b_sp=64, w_out=72,
          c=80, w_mod=88, out=96, dbg=104, ws=112)

WS_MODF = 0x0
WS_MP1  = 0x8000
WS_KN   = 0x10000
WS_ST1  = 0x14000
WS_MP2  = 0x18000
WS_UT   = 0xE0000
UT_PARTS = 4
K_SHIFT = 1
WS_ST2  = 0x20000
WS_ST3  = 0x60000
WS_KV   = 0xA0000
WS_H    = 0x100000
WS_O    = 0x500000
WS_X2   = 0x900000
WS_X2P  = 0xD00000
WS_Z1   = 0x1100000
WS_Z2   = 0x1800000
WS_Y    = 0x1F00000
WS_END  = 0x2600000

LOG2E = 1.4426950408889634
OPT = dict(kv.split("=") for kv in os.environ.get("OPT", "").split(",") if kv)


def opt(name, default):
    return int(OPT.get(name, default))


def sigma_next(ns, sT, sCol, sSig, t0, t1, color):
    if not color:
        return [f"s_add_u32 s{sT}, s{sT}, 1", f"s_mov_b32 s{sSig}, s{sT}"]
    return [f"s_and_b32 s{t0}, s{sT}, 3",
            f"s_cmp_eq_u32 s{t0}, s{sCol}",
            f"s_cselect_b32 s{t1}, 4, 0",
            f"s_cmp_ge_u32 s{t0}, s{sCol}",
            f"s_cselect_b32 s{t0}, 1, 0",
            f"s_cmp_ge_u32 s{sT}, {ns-4}",
            f"s_cselect_b32 s{t0}, s{t0}, s{t1}",
            f"s_add_u32 s{sSig}, s{sT}, s{t0}",
            f"s_add_u32 s{sT}, s{sT}, 1"]


def sigma_init(k, s_i, s_j, sT, sCol, sSig, color):
    k(f"s_add_u32 s{sCol}, s{s_i}, s{s_j}\ns_and_b32 s{sCol}, s{sCol}, 3\ns_mov_b32 s{sT}, 0")
    k(f"s_mov_b32 s{sSig}, s{sCol}" if color else f"s_mov_b32 s{sSig}, 0")


def f2u(x):
    return struct.unpack("<I", struct.pack("<f", x))[0]


def fx(x):
    return hex(f2u(x))


def vr(b, n=1):
    return f"v{b}" if n == 1 else f"v[{b}:{b+n-1}]"


def sr(b, n=1):
    return f"s{b}" if n == 1 else f"s[{b}:{b+n-1}]"


class Kern:
    def __init__(self, name, grid, block, lds, vgpr, sgpr=96):
        self.name, self.grid, self.block, self.lds, self.vgpr, self.sgpr = name, grid, block, lds, vgpr, sgpr
        self.L = []

    def __call__(self, s):
        for l in s.strip("\n").split("\n"):
            l = l.strip()
            if l:
                self.L.append(l if l.endswith(":") else "    " + l)

    def vm(self, text, tag=None):
        self.L.append(("vm", "    " + text.strip(), tag))

    def wait(self, need, lgkm=None):
        self.L.append(("wait", need, lgkm))

    def loop(self, name, trips):
        self.L.append(("loop", trips))
        self.label(name)

    def endloop(self):
        self.L.append(("endloop",))

    def resolve(self):
        L, cnt, issued = self.L, {}, []

        def run(lo, hi, it):
            for i in range(lo, hi):
                e = L[i]
                if isinstance(e, str):
                    continue
                if e[0] == "vm":
                    issued.append(e[2](it) if callable(e[2]) else e[2])
                elif e[0] == "wait":
                    need = e[1](it) if callable(e[1]) else e[1]
                    n = 63
                    for t in need:
                        pos = max(p for p, x in enumerate(issued) if x == t)
                        n = min(n, len(issued) - 1 - pos)
                    cnt[i] = min(cnt.get(i, 63), n)

        i = 0
        while i < len(L):
            e = L[i]
            if isinstance(e, tuple) and e[0] == "loop":
                j = next(p for p in range(i, len(L)) if L[p] == ("endloop",))
                for it in range(e[1]):
                    run(i + 1, j, it)
                i = j + 1
            else:
                run(i, i + 1, None)
                i += 1
        out = []
        for i, e in enumerate(L):
            if isinstance(e, str):
                out.append(e)
            elif e[0] == "vm":
                out.append(e[1])
            elif e[0] == "wait":
                parts = ([f"vmcnt({cnt[i]})"] if cnt[i] < 63 else []) + ([f"lgkmcnt({e[2]})"] if e[2] is not None else [])
                out.append("    s_waitcnt " + " ".join(parts) if parts else "    s_nop 0")
        return out

    def lab(self, s):
        return f"L_{self.name}_{s}"

    def label(self, s):
        self.L.append(self.lab(s) + ":")

    def ptr(self, dst, key):
        self(f"s_load_dwordx2 {sr(dst,2)}, s[0:1], {KA[key]}")

    def srd(self, d, ptr, size, off=0):
        if off == 0:
            self(f"s_mov_b32 s{d}, s{ptr}\ns_mov_b32 s{d+1}, s{ptr+1}")
        else:
            o = off if isinstance(off, str) else hex(off)
            self(f"s_add_u32 s{d}, s{ptr}, {o}\ns_addc_u32 s{d+1}, s{ptr+1}, 0")
        self(f"s_mov_b32 s{d+2}, {hex(size)}\ns_mov_b32 s{d+3}, 0x00020000")

    def exit_if_ge(self, n):
        self(f"s_cmp_ge_u32 s2, {n}\ns_cbranch_scc1 {self.lab('end')}")

    def wave_id(self, sdst, vtmp):
        self(f"v_lshrrev_b32 v{vtmp}, 6, v0\ns_nop 0\nv_readfirstlane_b32 s{sdst}, v{vtmp}\ns_nop 3")

    def stamp(self, i):
        if STAMP:
            self(f"s_memtime s[{72+2*i}:{73+2*i}]\ns_waitcnt lgkmcnt(0)")

    def text(self):
        kn = f"{self.name}_kernel"
        out = [f".globl {kn}", ".p2align 8", f".type {kn},@function", f"{kn}:"]
        if STAMP:
            out += [f"    s_mov_b32 s{i}, 0" for i in range(72, 88)]
            out += ["    s_memrealtime s[68:69]", "    s_memtime s[70:71]", "    s_waitcnt lgkmcnt(0)"]
        out += self.resolve()
        out += [self.lab("end") + ":"]
        if STAMP:
            t = f"""s_memtime s[84:85]
            s_waitcnt vmcnt(0) lgkmcnt(0)
            s_memtime s[86:87]
            s_memrealtime s[88:89]
            s_load_dwordx2 s[90:91], s[0:1], 112
            s_waitcnt lgkmcnt(0)
            s_add_u32 s92, s90, {hex(WS_DBG + self.idx * 0x40000)}
            s_addc_u32 s93, s91, 0
            s_mov_b32 s94, 0x40000
            s_mov_b32 s95, 0x00020000
            s_mov_b64 exec, -1
            v_lshrrev_b32 v1, 6, v0
            s_mul_i32 s90, s2, {self.block//64}
            v_add_u32 v1, s90, v1
            v_lshlrev_b32 v1, 6, v1
            v_mov_b32 v4, s68
            v_mov_b32 v5, s88
            v_mov_b32 v6, s70
            v_mov_b32 v7, s72
            v_mov_b32 v8, s74
            v_mov_b32 v9, s76
            v_mov_b32 v10, s78
            v_mov_b32 v11, s80
            v_mov_b32 v12, s82
            v_mov_b32 v13, s84
            v_mov_b32 v14, s86
            v_mov_b32 v15, s86
            buffer_store_dwordx4 v[4:7], v1, s[92:95], 0 offen
            buffer_store_dwordx4 v[8:11], v1, s[92:95], 0 offen offset:16
            buffer_store_dwordx4 v[12:15], v1, s[92:95], 0 offen offset:32"""
            out += ["    " + l.strip() for l in t.split("\n")]
        out += ["    s_endpgm"]
        return "\n".join(out) + "\n"

    def desc(self):
        kn = f"{self.name}_kernel"
        acc = (self.vgpr + 3) // 4 * 4
        return f""".p2align 6
.amdhsa_kernel {kn}
  .amdhsa_next_free_vgpr {self.vgpr}
  .amdhsa_next_free_sgpr {self.sgpr}
  .amdhsa_accum_offset {acc}
  .amdhsa_group_segment_fixed_size 0
  .amdhsa_kernarg_size 120
  .amdhsa_user_sgpr_count 2
  .amdhsa_user_sgpr_kernarg_segment_ptr 1
  .amdhsa_system_sgpr_workgroup_id_x 1
.end_amdhsa_kernel
"""

    def launch(self):
        return f"; @launch kernel={self.name}_kernel grid=({self.grid},1,1) block=({self.block},1,1) lds={self.lds}"


def mfma(d, a, b, c=None):
    cs = vr(d, 16) if c is None else (c if isinstance(c, str) else vr(c, 16))
    return f"v_mfma_f32_32x32x16_bf16 {vr(d,16)}, {vr(a,4)}, {vr(b,4)}, {cs}"


def half_allreduce(k, op, v, t):
    k(f"""v_mov_b32 v{t}, v{v}
    s_nop 1
    v_permlane32_swap_b32 v{t}, v{v}
    s_nop 1
    {op} v{v}, v{v}, v{t}""")


def wave_allreduce(k, op, regs, tmps):
    pad = max(0, 2 - (len(regs) - 1))
    for ctl in ("quad_perm:[1,0,3,2]", "quad_perm:[2,3,0,1]", "row_half_mirror", "row_mirror"):
        if pad:
            k(f"s_nop {pad-1}")
        for v in regs:
            k(f"{op}_dpp v{v}, v{v}, v{v} {ctl} row_mask:0xf bank_mask:0xf")
    for sw in ("v_permlane16_swap_b32", "v_permlane32_swap_b32"):
        for v, t in zip(regs, tmps):
            k(f"v_mov_b32 v{t}, v{v}")
        k("s_nop 1")
        for v, t in zip(regs, tmps):
            k(f"{sw} v{t}, v{v}")
        k("s_nop 1")
        for v, t in zip(regs, tmps):
            k(f"{op} v{v}, v{v}, v{t}")


def tr_lane_base(k, vd, vt, vlane, rowbytes, korder, swz):
    hm = 4 if korder == "perm" else 8
    k(f"""v_lshrrev_b32 v{vd}, 5, v{vlane}
    v_mul_u32_u24 v{vd}, {hm}, v{vd}
    v_bfe_u32 v{vt}, v{vlane}, 2, 2
    v_add_u32 v{vd}, v{vd}, v{vt}
    v_mul_u32_u24 v{vd}, {rowbytes}, v{vd}
    v_bfe_u32 v{vt}, v{vlane}, 4, 1
    v_lshl_add_u32 v{vd}, v{vt}, 5, v{vd}
    v_and_b32 v{vt}, 3, v{vlane}
    v_lshl_add_u32 v{vd}, v{vt}, 3, v{vd}""")
    if swz:
        k(f"""v_bfe_u32 v{vt}, v{vlane}, 3, 1
        v_lshl_add_u32 v{vd}, v{vt}, 6, v{vd}""")


def dma64_lane_off(k, vd, vt, vlane, rs):
    k(f"""v_lshrrev_b32 v{vd}, 3, v{vlane}
    v_mul_u32_u24 v{vd}, {rs}, v{vd}
    v_bfe_u32 v{vt}, v{vlane}, 4, 1
    v_lshlrev_b32 v{vt}, 2, v{vt}
    v_xor_b32 v{vt}, v{vt}, v{vlane}
    v_and_b32 v{vt}, 7, v{vt}
    v_lshl_add_u32 v{vd}, v{vt}, 4, v{vd}""")


G_ACC, G_WF, G_AF = 16, 48, 80


def tile_map_4x8(k, s_mt, s_nt):
    k(f"""s_and_b32 s40, s2, 7
    s_lshr_b32 s41, s2, 3
    s_lshr_b32 s{s_mt}, s40, 1
    s_lshl_b32 s{s_mt}, s{s_mt}, 2
    s_and_b32 s42, s41, 3
    s_add_u32 s{s_mt}, s{s_mt}, s42
    s_and_b32 s{s_nt}, s40, 1
    s_lshl_b32 s{s_nt}, s{s_nt}, 3
    s_lshr_b32 s42, s41, 2
    s_add_u32 s{s_nt}, s{s_nt}, s42""")
```

```python
from g_base import *


def job_issue(k, srdW, rs, s_off, s_lds, va, vt, st, fl=""):
    dma64_lane_off(k, va, vt, 1, rs)
    k(f"s_mov_b32 s{st}, s{s_lds}")
    for i in range(8):
        k(f"s_mov_b32 m0, s{st}\ns_add_u32 s{st}, s{st}, 1024")
        k.vm(f"buffer_load_dwordx4 v{va}, {sr(srdW,4)}, s{s_off} offen {fl} lds", ("job", i))
        k(f"s_add_u32 s{s_off}, s{s_off}, {8*rs}")


def job_compute(k, s_lds, s_vec, two, R, waits=True):
    a0, a1, av, t = R, R + 1, R + 2, R + 3
    AC, VF, WF = R + 4, R + 36, R + 52
    tr_lane_base(k, a0, t, 1, 128, "std", True)
    k(f"""v_add_u32 v{a0}, s{s_lds}, v{a0}
    v_xor_b32 v{a1}, 64, v{a0}
    v_lshrrev_b32 v{av}, 5, v1
    v_lshl_add_u32 v{av}, v{av}, 4, s{s_vec}""")
    if two:
        k(f"v_and_b32 v{t}, 1, v1\nv_lshl_add_u32 v{av}, v{t}, 7, v{av}")
    k("s_waitcnt lgkmcnt(0)")
    for a in range(4):
        k(f"ds_read_b128 {vr(VF+4*a,4)}, v{av} offset:{a*32}")

    def rd(a):
        b = WF + 8 * (a & 1)
        if waits:
            k.wait([("job", 2 * a + 1)])
        k(f"""ds_read_b64_tr_b16 {vr(b,2)}, v{a0} offset:{a*2048}
        ds_read_b64_tr_b16 {vr(b+2,2)}, v{a0} offset:{a*2048+512}
        ds_read_b64_tr_b16 {vr(b+4,2)}, v{a1} offset:{a*2048}
        ds_read_b64_tr_b16 {vr(b+6,2)}, v{a1} offset:{a*2048+512}""")

    rd(0); rd(1)
    for a in range(4):
        b = WF + 8 * (a & 1)
        k(f"s_waitcnt lgkmcnt({4 if a < 3 else 0})")
        k(mfma(AC, VF + 4 * a, b, "0" if a == 0 else None))
        k(mfma(AC + 16, VF + 4 * a, b + 4, "0" if a == 0 else None))
        if a < 2:
            rd(a + 2)
    k(f"""v_cmp_gt_u32 vcc, 32, v1
    s_nop 11
    v_cndmask_b32 v{R}, v{AC+16}, v{AC}, vcc
    v_cndmask_b32 v{R+1}, v{AC+17}, v{AC+1}, vcc""")


def job_reduce(k, nw, s_wave, red, two, R, st):
    k(f"""s_lshl_b32 s{st}, s{s_wave}, 9
    s_add_u32 s{st}, s{st}, {red}
    v_lshl_add_u32 v{R+2}, v1, 2, s{st}
    ds_write_b32 v{R+2}, v{R}""")
    if two:
        k(f"ds_write_b32 v{R+2}, v{R+1} offset:256")
    k(f"""s_and_b32 s{st}, s{s_wave}, 1
    s_lshl_b32 s{st}, s{st}, 8
    s_add_u32 s{st}, s{st}, {red}
    v_lshl_add_u32 v{R+2}, v1, 2, s{st}
    s_waitcnt lgkmcnt(0)
    s_barrier""")
    for w in range(nw):
        k(f"ds_read_b32 v{R+4+w}, v{R+2} offset:{w*512}")
    k("s_waitcnt lgkmcnt(0)")
    n = nw
    while n > 2:
        for w in range(n // 2):
            k(f"v_add_f32 v{R+4+w}, v{R+4+w}, v{R+4+w+n//2}")
        n //= 2
    k(f"v_add_f32 v{R}, v{R+4}, v{R+5}")


def mod_job(k, nw, s_wave, s_row, s_colb, srdC, srdW, srdWS, s_out):
    VEC, RED = 65536, 65536 + 2048
    k(f"""s_lshl_b32 s40, s{s_wave}, 6
    s_add_u32 s40, s40, s{s_row}
    s_lshl_b32 s41, s40, 1
    v_and_b32 v3, 31, v1
    v_lshlrev_b32 v3, 2, v3""")
    k.vm(f"buffer_load_dword v6, v3, {sr(srdC,4)}, s41 offen", "c")
    k(f"""s_mul_i32 s40, s40, 12288
    s_add_u32 s40, s40, s{s_colb}
    s_lshl_b32 s42, s{s_wave}, 13""")
    job_issue(k, srdW, 12288, 40, 42, 4, 5, 43, "nt" if opt("ntm", 1) else "")
    k(f"s_lshl_b32 s41, s{s_wave}, 7\ns_add_u32 s41, s41, {VEC}")
    k.wait(["c"])
    if k.name == "mod":
        k.stamp(1)
    k(f"""v_lshlrev_b32 v10, 16, v6
    v_and_b32 v11, 0xffff0000, v6
    v_mul_f32 v12, {fx(-LOG2E)}, v10
    v_mul_f32 v13, {fx(-LOG2E)}, v11
    v_exp_f32 v12, v12
    v_exp_f32 v13, v13
    v_add_u32 v3, s41, v3
    v_add_f32 v12, 1.0, v12
    v_add_f32 v13, 1.0, v13
    v_rcp_f32 v12, v12
    v_rcp_f32 v13, v13
    s_nop 0
    v_mul_f32 v10, v10, v12
    v_mul_f32 v11, v11, v13
    v_cvt_pk_bf16_f32 v10, v10, v11
    ds_write_b32 v3, v10""")
    job_compute(k, 42, 41, False, 16)
    if k.name == "mod":
        k.stamp(2)
    job_reduce(k, nw, s_wave, RED, False, 16, 43)
    k(f"""s_cmp_lg_u32 s{s_wave}, 0
    s_cbranch_scc1 {k.lab('end')}
    v_lshlrev_b32 v2, 2, v1
    buffer_store_dword v16, v2, {sr(srdWS,4)}, s{s_out} offen
    s_branch {k.lab('end')}""")


def k_mod():
    k = Kern("mod", 256, 256, 82944, 128)
    k.exit_if_ge(256)
    k("s_load_dwordx8 s[4:11], s[0:1], 0")
    k("s_load_dwordx4 s[12:15], s[0:1], 80")
    k.ptr(16, "ws")
    k("v_and_b32 v1, 63, v0")
    k.wave_id(3, 2)
    k("""s_and_b32 s30, s2, 7
    s_lshr_b32 s31, s2, 4
    s_lshl_b32 s32, s31, 3
    s_add_u32 s32, s32, s30
    s_bitcmp1_b32 s2, 3
    s_waitcnt lgkmcnt(0)""")
    k.stamp(0)
    k(f"s_cbranch_scc1 {k.lab('stats')}")
    k.srd(20, 16, WS_END); k.srd(24, 12, 2048); k.srd(36, 14, 1024 * 12288)
    k(f"""s_lshr_b32 s33, s32, 5
    s_and_b32 s34, s32, 31
    s_lshl_b32 s35, s33, 13
    s_lshl_b32 s44, s34, 8
    s_add_u32 s35, s35, s44
    s_add_u32 s35, s35, {WS_MP1}
    s_lshl_b32 s33, s33, 8
    s_lshl_b32 s34, s34, 7""")
    mod_job(k, 4, 3, 33, 34, 24, 36, 20, 35)
    k.label("stats")
    k.srd(20, 16, WS_END); k.srd(24, 4, 2048 * 2048)
    k(f"""s_lshr_b32 s33, s31, 1
    s_lshl_b32 s33, s33, 3
    s_add_u32 s33, s33, s30
    s_lshl_b32 s33, s33, 3
    s_and_b32 s34, s31, 1
    s_lshl_b32 s34, s34, 2
    s_add_u32 s33, s33, s34
    s_add_u32 s33, s33, s3
    s_lshl_b32 s34, s33, 13
    s_add_u32 s35, s34, 4096
    v_lshlrev_b32 v2, 4, v1""")
    X, F = 16, 48
    nx = "nt" if opt("ntx", 1) else ""
    for r in range(4):
        so = 34 if r < 2 else 35
        k.vm(f"buffer_load_dwordx4 {vr(X+8*r,4)}, v2, s[24:27], s{so} offen offset:{(r&1)*2048} {nx}")
        k.vm(f"buffer_load_dwordx4 {vr(X+8*r+4,4)}, v2, s[24:27], s{so} offen offset:{(r&1)*2048+1024} {nx}", ("x", r))
    if opt("pf1", 1):
        k("s_cmp_lt_u32 s31, 8\ns_cselect_b32 s8, s8, s10\ns_cselect_b32 s9, s9, s11")
        k.srd(36, 8, 65536); k.srd(40, 6, 1024 * 2048)
        k("""s_and_b32 s44, s31, 7
        s_lshl_b32 s44, s44, 13
        s_lshl_b32 s45, s3, 11
        s_add_u32 s44, s44, s45
        v_lshlrev_b32 v3, 5, v1""")
        k.vm(f"buffer_load_dword v4, v3, s[36:39], s44 offen {nx}")
        if opt("pf1", 1) > 1:
            k("""s_lshl_b32 s44, s31, 2
            s_add_u32 s44, s44, s3
            s_lshl_b32 s44, s44, 15
            s_and_b32 s45, s30, 1
            s_lshl_b32 s45, s45, 10
            s_add_u32 s44, s44, s45
            s_add_u32 s45, s44, 16384
            v_lshrrev_b32 v3, 3, v1
            v_lshlrev_b32 v3, 11, v3
            v_and_b32 v5, 7, v1
            v_lshl_add_u32 v3, v5, 7, v3""")
            k.vm(f"buffer_load_dword v5, v3, s[40:43], s44 offen {nx}")
            k.vm(f"buffer_load_dword v6, v3, s[40:43], s45 offen {nx}")
    S = [8, 10, 12, 14]
    for r in range(4):
        b = F + 16 * r
        k.wait([("x", r)])
        if r in (0, 3):
            k.stamp(3 if r == 0 else 4)
        for j in range(8):
            k(f"v_lshlrev_b32 v{b+2*j}, 16, v{X+8*r+j}\nv_and_b32 v{b+2*j+1}, 0xffff0000, v{X+8*r+j}")
        k(f"v_pk_add_f32 {vr(S[r],2)}, {vr(b,2)}, {vr(b+2,2)}")
        for j in range(2, 8):
            k(f"v_pk_add_f32 {vr(S[r],2)}, {vr(S[r],2)}, {vr(b+2*j,2)}")
        k(f"v_add_f32 v{S[r]}, v{S[r]}, v{S[r]+1}")
    wave_allreduce(k, "v_add_f32", S, [x + 1 for x in S])
    Q = [16, 18, 20, 22]
    for r in range(4):
        b = F + 16 * r
        k(f"v_mul_f32 v{S[r]}, {fx(-1/1024)}, v{S[r]}")
        for j in range(8):
            k(f"v_pk_add_f32 {vr(b+2*j,2)}, {vr(b+2*j,2)}, {vr(S[r],2)} op_sel_hi:[1,0]")
        k(f"v_pk_mul_f32 {vr(Q[r],2)}, {vr(b,2)}, {vr(b,2)}")
        for j in range(1, 8):
            k(f"v_pk_fma_f32 {vr(Q[r],2)}, {vr(b+2*j,2)}, {vr(b+2*j,2)}, {vr(Q[r],2)}")
        k(f"v_add_f32 v{Q[r]}, v{Q[r]}, v{Q[r]+1}")
    wave_allreduce(k, "v_add_f32", Q, [x + 1 for x in Q])
    k(f"v_mov_b32 v24, {fx(1e-5)}")
    for r in range(4):
        k(f"v_fmamk_f32 v{Q[r]}, v{Q[r]}, {fx(1/1024)}, v24")
    for r in range(4):
        k(f"v_rsq_f32 v{Q[r]}, v{Q[r]}")
    k(f"s_lshl_b32 s33, s33, 5\ns_add_u32 s33, s33, {WS_ST1}")
    for r in range(4):
        k(f"v_mul_f32 v{Q[r]+1}, v{Q[r]}, v{S[r]}")
    k("""v_mov_b32 v3, 0
    s_mov_b64 exec, 1
    buffer_store_dwordx4 v[16:19], v3, s[20:23], s33 offen
    buffer_store_dwordx4 v[20:23], v3, s[20:23], s33 offen offset:16""")
    return k


def k_lnkv():
    XL, GL, NRM = 65536, 131072, 131072 + 8192
    k = Kern("lnkv", 256, 512, NRM + 256, 128)
    k.exit_if_ge(256)
    k("s_load_dwordx8 s[4:11], s[0:1], 0")
    k("s_load_dwordx4 s[12:15], s[0:1], 80")
    k.ptr(16, "ws")
    k("v_and_b32 v1, 63, v0")
    k.wave_id(3, 2)
    k("""s_lshr_b32 s31, s2, 5
    s_bitcmp0_b32 s2, 4
    s_waitcnt lgkmcnt(0)""")
    k(f"s_cbranch_scc1 {k.lab('ln')}")
    if not opt("rest", 1):
        k(f"s_branch {k.lab('end')}")
    k.srd(20, 16, WS_END); k.srd(24, 12, 2048); k.srd(36, 14, 1024 * 12288)
    k(f"""s_and_b32 s32, s2, 15
    s_lshl_b32 s31, s31, 4
    s_add_u32 s32, s32, s31
    s_lshr_b32 s33, s32, 6
    s_and_b32 s34, s32, 63
    s_lshl_b32 s35, s33, 14
    s_lshl_b32 s44, s34, 8
    s_add_u32 s35, s35, s44
    s_add_u32 s35, s35, {WS_MP2}
    s_lshl_b32 s33, s33, 9
    s_lshl_b32 s34, s34, 7
    s_add_u32 s34, s34, 4096""")
    mod_job(k, 8, 3, 33, 34, 24, 36, 20, 35)
    k.label("ln")
    k("""s_and_b32 s30, s2, 7
    s_lshl_b32 s31, s31, 3
    s_add_u32 s30, s30, s31
    s_bfe_u32 s31, s2, 0x10003
    s_cmp_eq_u32 s31, 0
    s_cselect_b32 s8, s8, s10
    s_cselect_b32 s9, s9, s11""")
    k.srd(20, 16, WS_END); k.srd(24, 4, 2048 * 2048); k.srd(36, 8, 65536)
    P = 16
    k(f"""v_and_b32 v3, 31, v1
    v_lshrrev_b32 v4, 5, v1
    v_xor_b32 v5, 1, v4
    v_lshlrev_b32 v5, 12, v5
    v_lshl_add_u32 v5, v3, 4, v5
    s_lshl_b32 s32, s3, 9
    s_add_u32 s32, s32, {WS_MP1}""")
    for p in range(4):
        k.vm(f"buffer_load_dwordx4 {vr(P+4*p,4)}, v5, s[20:23], s32 offen", ("p", p))
        k("s_add_u32 s32, s32, 8192")
    k(f"""s_lshl_b32 s32, s30, 8
    s_add_u32 s32, s32, {WS_ST1}
    v_lshlrev_b32 v5, 3, v3""")
    k.vm("buffer_load_dwordx2 v[8:9], v5, s[20:23], s32 offen", "st")
    if opt("k2bar", 1):
        k("s_barrier")
    k(f"""v_lshrrev_b32 v5, 4, v1
    v_xor_b32 v6, v5, v1
    v_and_b32 v6, 15, v6
    v_lshlrev_b32 v5, 11, v5
    v_lshl_add_u32 v5, v6, 4, v5
    s_lshl_b32 s33, s3, 13
    s_lshl_b32 s32, s30, 16
    s_lshl_b32 s34, s3, 8
    s_add_u32 s32, s32, s34
    s_add_u32 s34, s33, {XL}""")
    for i in range(8):
        k(f"s_mov_b32 m0, s34\nv_xor_b32 v6, {(i&3)*64}, v5")
        k.vm("buffer_load_dwordx4 v6, s[24:27], s32 offen lds", ("x", i))
        k("s_add_u32 s34, s34, 1024\ns_add_u32 s32, s32, 8192")
    k("v_lshlrev_b32 v2, 4, v1\ns_mov_b32 m0, s33\ns_add_u32 s34, s33, 4096")
    for i in range(4):
        k.vm(f"buffer_load_dwordx4 v2, s[36:39], s33 offen offset:{i*1024} lds")
    k("s_mov_b32 m0, s34\ns_nop 0")
    for i in range(4):
        k.vm(f"buffer_load_dwordx4 v2, s[36:39], s34 offen offset:{i*1024} lds", ("w", i))
    k.stamp(0)
    k(f"""v_mov_b32 v6, 0
    v_lshlrev_b32 v7, 2, v1
    v_add_u32 v7, {NRM}, v7
    ds_write_b32 v7, v6
    v_cvt_f32_u32 v10, v4
    v_sub_f32 v10, 1.0, v10
    s_lshl_b32 s34, s3, 10
    s_add_u32 s34, s34, {GL}
    v_add_u32 v7, s34, v2""")
    k.wait([("p", 3)])
    k.stamp(1)
    k(f"""v_pk_add_f32 {vr(P,2)}, {vr(P,2)}, {vr(P+4,2)}
    v_pk_add_f32 {vr(P+2,2)}, {vr(P+2,2)}, {vr(P+6,2)}
    v_pk_add_f32 {vr(P+8,2)}, {vr(P+8,2)}, {vr(P+12,2)}
    v_pk_add_f32 {vr(P+10,2)}, {vr(P+10,2)}, {vr(P+14,2)}
    v_pk_add_f32 {vr(P,2)}, {vr(P,2)}, {vr(P+8,2)}
    v_pk_add_f32 {vr(P+2,2)}, {vr(P+2,2)}, {vr(P+10,2)}""")
    for rnd in range(2):
        k(f"""v_cvt_pk_bf16_f32 v{P+4}, v{P}, v{P+1}
        v_cvt_pk_bf16_f32 v{P+5}, v{P+2}, v{P+3}
        v_lshlrev_b32 v{P}, 16, v{P+4}
        v_and_b32 v{P+1}, 0xffff0000, v{P+4}
        v_lshlrev_b32 v{P+2}, 16, v{P+5}
        v_and_b32 v{P+3}, 0xffff0000, v{P+5}""")
        if rnd == 0:
            k(f"""v_pk_add_f32 {vr(P,2)}, {vr(P,2)}, v[10:11] op_sel_hi:[1,0]
            v_pk_add_f32 {vr(P+2,2)}, {vr(P+2,2)}, v[10:11] op_sel_hi:[1,0]""")
    k(f"""ds_write_b128 v7, {vr(P,4)}
    v_lshl_add_u32 v7, v4, 5, s34
    v_and_b32 v6, 15, v1
    v_xor_b32 v6, v6, v4
    v_lshlrev_b32 v6, 4, v6
    v_lshl_add_u32 v6, v3, 8, v6
    s_add_u32 s34, s33, {XL}
    v_add_u32 v6, s34, v6""")
    tr_lane_base(k, 12, 13, 1, 64, "std", False)
    k("v_add_u32 v12, s33, v12")
    HF, GB, T, WF, ACC = 16, 48, 80, 88, 48
    k.wait([("x", 7)], 0)
    k.stamp(2)
    for a in range(8):
        k(f"v_xor_b32 v13, {a*32}, v6\nds_read_b128 {vr(HF+4*a,4)}, v13")

    def gbread(a):
        g = GB + 16 * (a & 1)
        k(f"""ds_read_b128 {vr(g,4)}, v7 offset:{a*64}
        ds_read_b128 {vr(g+4,4)}, v7 offset:{a*64+16}
        ds_read_b128 {vr(g+8,4)}, v7 offset:{512+a*64}
        ds_read_b128 {vr(g+12,4)}, v7 offset:{512+a*64+16}""")

    gbread(0)
    k(f"""s_lshl_b32 s35, s30, 16
    s_add_u32 s35, s35, s33
    s_add_u32 s35, s35, {hex(WS_H)}
    s_add_u32 s44, s35, 4096
    s_cmp_eq_u32 s31, 0
    s_cselect_b32 s35, s35, 0x7f000000
    s_cselect_b32 s44, 0x7f000000, s44""")
    for a in range(8):
        g, h = GB + 16 * (a & 1), HF + 4 * a
        k("s_waitcnt lgkmcnt(0)")
        if a < 7:
            gbread(a + 1)
        for j in range(4):
            k(f"v_lshlrev_b32 v{T+2*j}, 16, v{h+j}\nv_and_b32 v{T+2*j+1}, 0xffff0000, v{h+j}")
        for j in range(4):
            k(f"v_pk_fma_f32 {vr(T+2*j,2)}, {vr(T+2*j,2)}, v[8:9], v[8:9] op_sel:[0,0,1] op_sel_hi:[1,0,1]")
        for j in range(4):
            k(f"v_pk_fma_f32 {vr(T+2*j,2)}, {vr(T+2*j,2)}, {vr(g+2*j,2)}, {vr(g+8+2*j,2)}")
        for j in range(4):
            k(f"v_cvt_pk_bf16_f32 v{h+j}, v{T+2*j}, v{T+2*j+1}")
        k.vm(f"buffer_store_dwordx4 {vr(h,4)}, v2, s[20:23], s{35 if a < 4 else 44} offen offset:{(a&3)*1024}")
    k.wait([("w", 3)])
    k.stamp(3)
    for a in range(8):
        k(f"ds_read_b64_tr_b16 {vr(WF+4*a,2)}, v12 offset:{a*1024}")
        k(f"ds_read_b64_tr_b16 {vr(WF+4*a+2,2)}, v12 offset:{a*1024+256}")
        if a == 5:
            k("s_waitcnt lgkmcnt(8)")
    k(f"s_cmp_eq_u32 s31, 0\ns_cbranch_scc0 {k.lab('v')}")
    for a in range(8):
        k(f"s_waitcnt lgkmcnt({min(12, 14-2*a)})")
        k(mfma(ACC, WF + 4 * a, HF + 4 * a, "0" if a == 0 else None))
    k(f"s_branch {k.lab('red')}")
    k.label("v")
    for a in range(8):
        k(f"s_waitcnt lgkmcnt({min(12, 14-2*a)})")
        k(mfma(ACC, HF + 4 * a, WF + 4 * a, "0" if a == 0 else None))
    k.label("red")
    k(f"""v_lshlrev_b32 v6, 3, v1
    v_add_u32 v7, s33, v6
    s_lshl_b32 s34, s3, 9
    v_add_u32 v6, s34, v6
    s_add_u32 s34, s30, 63
    s_add_u32 s34, s34, s31
    s_and_b32 s34, s34, 63
    s_lshl_b32 s34, s34, 12
    s_lshl_b32 s35, s31, 11
    s_add_u32 s34, s34, s35
    s_lshr_b32 s35, s3, 2
    s_lshl_b32 s35, s35, 10
    s_add_u32 s34, s34, s35
    s_and_b32 s35, s3, 3
    s_lshl_b32 s35, s35, 2
    s_add_u32 s34, s34, s35
    s_add_u32 s34, s34, {hex(WS_KV)}""")
    for p in range(8):
        k(f"ds_write_b64 v7, {vr(ACC+2*p,2)} offset:{p*512}")
    k("s_waitcnt lgkmcnt(0)\ns_barrier")
    k.stamp(4)
    for w in range(8):
        k(f"ds_read_b64 {vr(64+2*w,2)}, v6 offset:{w*8192}")
    k("s_waitcnt lgkmcnt(0)")
    for n in (4, 2, 1):
        for w in range(n):
            k(f"v_pk_add_f32 {vr(64+2*w,2)}, {vr(64+2*w,2)}, {vr(64+2*(w+n),2)}")
    k(f"""v_cvt_pk_bf16_f32 v8, v64, v65
    buffer_store_dword v8, v2, s[20:23], s34 offen
    s_cmp_eq_u32 s31, 0
    s_cbranch_scc0 {k.lab('end')}
    v_lshlrev_b32 v9, 16, v8
    v_and_b32 v10, 0xffff0000, v8
    v_mul_f32 v9, v9, v9
    v_fmac_f32 v9, v10, v10
    v_lshlrev_b32 v5, 2, v3
    v_add_u32 v5, {NRM}, v5
    ds_add_f32 v5, v9
    s_waitcnt lgkmcnt(0)
    s_barrier
    s_cmp_lg_u32 s3, 0
    s_cbranch_scc1 {k.lab('end')}
    ds_read_b32 v9, v5
    s_waitcnt lgkmcnt(0)""")
    wave_allreduce(k, "v_max_f32", [9], [10])
    k(f"""s_lshl_b32 s34, s30, 2
    s_add_u32 s34, s34, {hex(WS_KN)}
    v_mov_b32 v5, 0
    s_mov_b64 exec, 1
    buffer_store_dword v9, v5, s[20:23], s34 offen""")
    return k
```

```python
from g_base import *
from g_front import job_issue, job_compute, job_reduce


def gemm64(k, nstage, korder, srdA, srdW, s_wave, s_mt, s_nt, extra=None, ring=0, color=1):
    RS = 2048
    LA = opt("la64", 2)
    sA, sW, sM, sC, sWb, sAn, sT, sCol, sSig = 44, 45, 46, 47, 49, 50, 51, 52, 53
    sigma_init(k, s_mt, s_nt, sT, sCol, sSig, color)
    dma64_lane_off(k, 4, 5, 1, RS)
    k(f"""s_lshl_b32 s{sWb}, s{s_wave}, 15
    s_lshl_b32 s48, s{s_nt}, 7
    s_add_u32 s{sWb}, s{sWb}, s48
    v_add_u32 v5, {8*RS-1024}, v4
    s_lshl_b32 s{sM}, s{s_wave}, 11""")

    def wdma(tag):
        k(f"""s_lshl_b32 s{sW}, s{sSig}, 17
        s_add_u32 s48, s{sM}, {ring}
        s_mov_b32 m0, s48
        s_add_u32 s{sW}, s{sW}, s{sWb}""")
        k.vm(f"buffer_load_dwordx4 v4, {sr(srdW,4)}, s{sW} offen lds")
        k(f"s_lshl_b32 s{sAn}, s{sSig}, 12")
        k.vm(f"buffer_load_dwordx4 v5, {sr(srdW,4)}, s{sW} offen offset:1024 lds", tag)
        k(f"s_add_u32 s{sM}, s{sM}, 8192\ns_and_b32 s{sM}, s{sM}, 0xffff")

    nxt = "\n".join(sigma_next(nstage, sT, sCol, sSig, 54, 55, color))

    def aload(u, t, tag):
        k.vm(f"buffer_load_dwordx4 {vr(G_AF+16*u+4*t,4)}, v2, {sr(srdA,4)}, s{sA} offen offset:{t*1024}", tag)

    second = 1024 if korder == "perm" else 512

    def reads(slot, step):
        b = G_WF + 8 * step
        o = slot * 8192 + step * 2048
        return [f"ds_read_b64_tr_b16 {vr(b,2)}, v6 offset:{o}",
                f"ds_read_b64_tr_b16 {vr(b+2,2)}, v6 offset:{o+second}",
                f"ds_read_b64_tr_b16 {vr(b+4,2)}, v7 offset:{o}",
                f"ds_read_b64_tr_b16 {vr(b+6,2)}, v7 offset:{o+second}"]

    wdma(("W", 0))
    k(f"s_mov_b32 s{sA}, s{sAn}")
    for u in range(LA):
        aload(u, 0, ("A", u, 0)); aload(u, 1, ("A", u, 1))
        k(nxt); wdma(("W", u + 1))
        aload(u, 2, ("A", u, 2)); aload(u, 3, ("A", u, 3))
        k(f"s_mov_b32 s{sA}, s{sAn}")
        if u == 0:
            tr_lane_base(k, 6, 8, 1, 128, korder, True)
            k(f"v_add_u32 v6, {ring}, v6\nv_xor_b32 v7, 64, v6")
            for i in range(32):
                k(f"v_mov_b32 v{G_ACC+i}, 0")
    k.stamp(0)
    k(f"s_mov_b32 s{sC}, {nstage//4-1}")
    k.wait([("W", 0)])
    k("s_barrier")
    k.stamp(1)
    k("\n".join(reads(0, 0) + reads(0, 1)))
    extra = list(extra or [])

    def group(base):
        st = (lambda it, u: 4 * it + u) if base is None else (lambda it, u: base + u)
        for u in range(4):
            s_last = (nstage - 8 + u) if base is None else base + u
            for t in range(4):
                fin = s_last == nstage - 1
                if t == 2 and not fin:
                    k.wait(lambda it, u=u: [("A", st(it, u), 2), ("W", st(it, u) + 1)], 4)
                    k("s_barrier")
                    if u == 3:
                        k("v_xor_b32 v6, 0x8000, v6\nv_xor_b32 v7, 0x8000, v7")
                else:
                    k.wait(lambda it, u=u, t=t: [("A", st(it, u), t)], 0 if (fin and t == 3) else 4)
                r = reads(u, t + 2) if t < 2 else reads((u + 1) & 3, t - 2)
                if fin and t >= 2:
                    r = [""] * 4
                a = G_AF + 16 * u + 4 * t
                k(mfma(G_ACC, G_WF + 8 * t, a))
                k(r[0]); k(r[1])
                if s_last + LA + 1 < nstage:
                    if t == 1:
                        k(nxt)
                    if t == 2:
                        wdma(lambda it, u=u: ("W", st(it, u) + LA + 1))
                k(mfma(G_ACC + 16, G_WF + 8 * t + 4, a))
                k(r[2]); k(r[3])
                if s_last + LA < nstage:
                    aload((u + LA) & 3, t, lambda it, u=u, t=t: ("A", st(it, u) + LA, t))
                    if t == 3:
                        k(f"s_mov_b32 s{sA}, s{sAn}")
                elif extra:
                    extra.pop(0)()

    k.loop("gl", nstage // 4 - 1)
    group(None)
    k(f"s_sub_u32 s{sC}, s{sC}, 1\ns_cmp_lg_u32 s{sC}, 0\ns_cbranch_scc1 {k.lab('gl')}")
    k.endloop()
    group(nstage - 4)
    assert not extra
    k.stamp(2)


def k_attn():
    k = Kern("attn", 256, 256, 131072, 208, 102)
    k.exit_if_ge(256)
    k.ptr(4, "wq"); k.ptr(6, "ws"); k.ptr(8, "wo")
    k("s_load_dwordx4 s[56:59], s[0:1], 48")
    k.ptr(10, "w_out"); k.ptr(28, "x")
    k("v_and_b32 v1, 63, v0\nv_lshlrev_b32 v2, 4, v1")
    k.wave_id(3, 3)
    tile_map_4x8(k, 30, 31)
    k(f"""s_lshl_b32 s32, s30, 2
    s_add_u32 s32, s32, s3
    s_lshl_b32 s33, s32, 16
    s_add_u32 s34, s33, {hex(WS_H)}
    s_waitcnt lgkmcnt(0)""")
    k.srd(12, 6, 65536, "s34"); k.srd(16, 4, 1024 * 2048); k.srd(20, 6, WS_END); k.srd(24, 6, 262144, WS_KV)
    QA, QB, NA, NB, SA, SB, PA, PB, OA, OB, LA, LB, KR, VR, ONE, IDX, KN, MP = \
        48, 56, 64, 80, 96, 112, 128, 136, 144, 160, 176, 180, 184, 192, 200, 204, 205, 206
    sD, sM = 36, 37

    def kvdma(i, tag=None):
        k.vm(f"buffer_load_dwordx4 v2, s[24:27], s{sD} offen offset:{(i&3)*1024} lds", tag)

    def kv_half(tag):
        def f():
            k(f"s_mov_b32 m0, s{sM}\ns_nop 0")
            for i in range(4):
                kvdma(i, tag)
        return f

    def step4k():
        k(f"s_add_u32 s{sD}, s{sD}, 4096\ns_add_u32 s{sM}, s{sM}, 4096")

    def step28k():
        k(f"s_add_u32 s{sD}, s{sD}, 28672\ns_add_u32 s{sM}, s{sM}, 28672\ns_and_b32 s{sM}, s{sM}, 0x1ffff")

    def k0load():
        k(f"s_mov_b32 s35, {63*4096}")
        k.vm(f"buffer_load_dwordx4 {vr(KR,4)}, v2, s[24:27], s35 offen")
        k.vm(f"buffer_load_dwordx4 {vr(KR+4,4)}, v2, s[24:27], s35 offen offset:1024", "k0")

    def first():
        k(f"""v_lshlrev_b32 v3, 2, v1
        s_mov_b32 s35, {hex(WS_KN)}""")
        k.vm(f"buffer_load_dword v{KN}, v3, s[20:23], s35 offen", "kn")
        k0load()
        k(f"s_lshl_b32 s{sD}, s3, 13\ns_mov_b32 s{sM}, s{sD}")

    def small():
        k(f"""s_lshl_b32 s35, s2, 10
        s_add_u32 s38, s35, {hex(WS_ST3)}
        s_add_u32 s35, s35, {hex(WS_MP2)}
        s_cmp_lt_u32 s2, 16
        s_cselect_b32 s35, s35, 0x7f000000
        s_add_u32 s39, s35, 16384
        v_lshlrev_b32 v3, 2, v0
        v_mov_b32 v9, -1""")
        k.vm(f"buffer_load_dword v{MP}, v3, s[20:23], s35 offen")
        k.vm(f"buffer_load_dword v{MP+1}, v3, s[20:23], s39 offen", "mp")
        k.vm("buffer_store_dword v9, v3, s[20:23], s38 offen")

    ex = [first, small, kv_half("c0"), lambda: (step4k(), kv_half("c0")()), lambda: (step28k(), kv_half("c1")()),
          lambda: (step4k(), kv_half("c1")(), step28k())]
    gemm64(k, 16, "std", 12, 16, 3, 30, 31, ex, ring=65536, color=opt("colq", 1))
    k("""s_lshl_b32 s38, s2, 2
    s_add_u32 s38, s38, s3
    s_lshr_b32 s39, s2, 3
    s_lshl_b32 s39, s39, 2
    s_add_u32 s39, s39, s3
    s_and_b32 s40, s2, 7""")
    CS = LOG2E * 32 ** -0.5
    k.wait(["kn"])
    wave_allreduce(k, "v_max_f32", [KN], [9])
    for hd, (Q, N) in enumerate(((QA, NA), (QB, NB))):
        a = G_ACC + 16 * hd
        k(f"v_mov_b32 v10, {fx(CS)}")
        for i in range(8):
            k(f"v_pk_mul_f32 {vr(a+2*i,2)}, {vr(a+2*i,2)}, v[10:11] op_sel_hi:[1,0]")
        for i in range(8):
            k(f"v_cvt_pk_bf16_f32 v{Q+i}, v{a+2*i}, v{a+2*i+1}")
        k(f"v_pk_mul_f32 v[10:11], {vr(a,2)}, {vr(a,2)}")
        for i in range(1, 8):
            k(f"v_pk_fma_f32 v[10:11], {vr(a+2*i,2)}, {vr(a+2*i,2)}, v[10:11]")
        k("v_add_f32 v10, v10, v11")
        half_allreduce(k, "v_add_f32", 10, 11)
        k(f"""v_mul_f32 v10, v10, v{KN}
        v_sqrt_f32 v10, v10
        s_nop 0
        v_sub_f32 v10, {fx(50.0)}, v10""")
        for i in range(8):
            k(f"v_pk_mov_b32 {vr(N+2*i,2)}, v[10:11], v[10:11] op_sel:[0,0]")
    k(f"""v_bfe_u32 v9, v1, 2, 1
    v_cmp_eq_u32 vcc, 0, v9
    v_mov_b32 v10, 0x3f803f80
    v_and_b32 v9, 1, v1
    v_cndmask_b32 v{ONE}, 0, v10, vcc
    v_mul_u32_u24 v9, 0xaaaa, v9
    v_add_u32 v{IDX}, 0x4444, v9
    v_mov_b32 v{ONE+1}, v{ONE}
    v_xor_b32 v{ONE+2}, v10, v{ONE}
    v_xor_b32 v{ONE+3}, v10, v{ONE}
    v_lshrrev_b32 v4, 2, v1
    v_and_b32 v5, 3, v1
    v_lshlrev_b32 v5, 7, v5""")
    E = 7
    BASE, STR = 44, 60
    k(f"""s_mov_b64 s[96:97], s[56:57]
    s_mov_b64 s[98:99], s[58:59]
    s_lshl_b32 s41, s38, 13
    s_add_u32 s{BASE}, s98, s41
    s_addc_u32 s{BASE+1}, s99, 0
    s_mov_b32 s{STR}, 512
    s_cmp_lt_u32 s38, 448
    s_cselect_b32 s42, s41, 0
    s_add_u32 s{BASE+2}, s10, s42
    s_addc_u32 s{BASE+3}, s11, 0
    s_mov_b32 s{STR+1}, 512""")
    k(f"""s_lshr_b32 s41, s39, 1
    s_lshl_b32 s41, s41, 15
    s_and_b32 s42, s39, 1
    s_lshl_b32 s42, s42, 9
    s_add_u32 s41, s41, s42
    s_and_b32 s42, s40, 1
    s_lshl_b32 s42, s42, 10
    s_add_u32 s41, s41, s42
    s_add_u32 s{BASE+8}, s8, s41
    s_addc_u32 s{BASE+9}, s9, 0
    s_mov_b32 s{STR+4}, 2048""")
    k(f"""s_and_b32 s41, s41, 0xfffff
    s_lshr_b32 s42, s40, 1
    s_lshl_b32 s42, s42, 20
    s_add_u32 s41, s41, s42
    s_add_u32 s{BASE+10}, s28, s41
    s_addc_u32 s{BASE+11}, s29, 0
    s_mov_b32 s{STR+5}, 2048""")
    k(f"""s_lshr_b32 s41, s39, 1
    s_mul_i32 s41, s41, {16*7168}
    s_and_b32 s42, s39, 1
    s_mul_i32 s42, s42, 3584
    s_add_u32 s41, s41, s42
    s_and_b32 s42, s40, 3
    s_lshl_b32 s43, s42, 9
    s_add_u32 s43, s43, s41
    s_add_u32 s{BASE+4}, s96, s43
    s_addc_u32 s{BASE+5}, s97, 0
    s_mov_b32 s{STR+2}, 7168
    s_mul_i32 s43, s42, 384
    s_add_u32 s43, s43, s41
    s_add_u32 s43, s43, {2048-128}
    s_add_u32 s{BASE+6}, s96, s43
    s_addc_u32 s{BASE+7}, s97, 0
    s_mov_b32 s{STR+3}, 7168
    s_mov_b64 s[{BASE+12}:{BASE+13}], s[24:25]
    s_mov_b32 s{STR+6}, 0
    s_mov_b32 s42, {hex(0x20000 if opt("pf3", 1) else 0)}
    s_mov_b32 s43, 0x00020000""")
    k.wait(["mp"])
    k(f"""v_add_f32 v9, v{MP}, v{MP+1}
    s_lshr_b32 s35, s2, 2
    s_cmp_eq_u32 s35, 2
    s_cselect_b32 s35, 1.0, 0
    v_cvt_pk_bf16_f32 v9, v9, v9
    v_lshlrev_b32 v9, 16, v9
    v_add_f32 v9, s35, v9
    s_lshl_b32 s35, s2, 10
    s_add_u32 s35, s35, {WS_MODF + 8192}
    s_cmp_lt_u32 s2, 16
    s_cselect_b32 s35, s35, 0x7f000000
    v_cvt_pk_bf16_f32 v9, v9, v9
    v_lshlrev_b32 v9, 16, v9""")
    k.vm("buffer_store_dword v9, v3, s[20:23], s35 offen")
    for i in range(16):
        k(f"v_pk_mov_b32 {vr(OA+2*i,2)}, 0, 0")
    for i in range(4):
        k(f"v_pk_mov_b32 {vr(LA+2*i,2)}, 0, 0\nv_pk_mov_b32 {vr(PB+2*i,2)}, 0, 0\nv_pk_mov_b32 {vr(VR+2*i,2)}, 0, 0")
    k("s_mov_b32 s39, 8\ns_mov_b32 s38, 0\nv_mov_b32 v6, v2")
    k(mfma(SA, KR, QA, NA)); k(mfma(SA, KR + 4, QA + 4))
    k("s_nop 7")

    def phase(SX, PX, SY, PY, OY, LY, NY, QY, after):
        M = [mfma(SY, KR, QY, NY), mfma(SY, KR + 4, QY + 4),
             mfma(OY, VR, PY), mfma(OY, VR + 4, PY + 4),
             f"v_smfmac_f32_16x16x64_bf16 {vr(LY,4)}, {vr(ONE,4)}, {vr(PY,8)}, v{IDX}"]
        e = lambda i: (f"v_exp_f32 v{SX+i}, v{SX+i}", 8)
        c = lambda i: (f"v_cvt_pk_bf16_f32 v{PX+i}, v{SX+2*i}, v{SX+2*i+1}", 4)
        V = [e(0), e(1), e(2), c(0)]
        for i in range(1, 6):
            V += [e(2 * i + 1), e(2 * i + 2), c(i)]
        V += [e(13), e(14), e(15), c(6), c(7)]
        acc = 0; m = 0
        for ins, cost in V:
            if m < 5 and acc >= 32 * m - 4:
                k(M[m])
                x = after[m]
                x() if callable(x) else k(x)
                m += 1
            k(ins); acc += cost
        assert m == 5

    shift = [f"s_mov_b64 s[40:41], s[{BASE}:{BASE+1}]", f"s_mov_b32 s35, s{STR}"]
    for e_ in range(E - 1):
        shift.append(f"s_mov_b64 s[{BASE+2*e_}:{BASE+2*e_+1}], s[{BASE+2*e_+2}:{BASE+2*e_+3}]")
    for e_ in range(E - 1):
        shift.append(f"s_mov_b32 s{STR+e_}, s{STR+e_+1}")
    k.stamp(3)
    k.loop("loop", 8)
    k.wait(lambda it: [f"c{it}"])
    if not opt("nobar", 0):
        k("s_barrier")
    slots = list(shift)
    for j in range(8):
        rd = lambda r, o: f"ds_read_b128 {vr(r,4)}, v6 offset:{j*4096+o}" if not opt("nords", 0) else ""
        phase(SA, PA, SB, PB, OB, LB, NB, QB,
              [rd(KR, 0), rd(KR + 4, 1024), rd(VR, 2048), rd(VR + 4, 3072), "s_waitcnt lgkmcnt(2)"])
        a0 = f"s_mov_b32 m0, s{sM}" if j in (0, 4) else slots.pop(0)
        a2 = lambda j=j: kvdma(j, lambda it: f"c{it+2}")
        if opt("nodma", 0) and j:
            a2 = ""
        if j == 3:
            a3, a4 = f"s_add_u32 s{sD}, s{sD}, 4096", f"s_add_u32 s{sM}, s{sM}, 4096"
        elif j == 7:
            a3, a4 = f"s_add_u32 s{sD}, s{sD}, 28672\ns_add_u32 s{sM}, s{sM}, 28672", f"s_and_b32 s{sM}, s{sM}, 0x1ffff\ns_sub_u32 s39, s39, 1"
        elif j == 6:
            a3, a4 = "s_add_u32 s38, s38, 0x8000", "s_and_b32 s38, s38, 0x1ffff"
        elif j == 1:
            a3 = "v_mad_u32_u24 v7, v4, s35, v5"
            a4 = lambda: k.vm("buffer_load_dword v8, v7, s[40:43], 0 offen")
        else:
            a3, a4 = slots.pop(0), slots.pop(0)
        phase(SB, PB, SA, PA, OA, LA, NA, QA, [a0, "s_waitcnt lgkmcnt(0)", a2, a3, a4])
    assert not slots
    k(f"v_add_u32 v6, s38, v2\ns_cmp_lg_u32 s39, 0\ns_cbranch_scc1 {k.lab('loop')}")
    k.endloop()
    k.stamp(4)
    k(mfma(OB, VR, PB)); k(mfma(OB, VR + 4, PB + 4))
    k(f"v_smfmac_f32_16x16x64_bf16 {vr(LB,4)}, {vr(ONE,4)}, {vr(PB,8)}, v{IDX}")
    k(f"""s_lshl_b32 s35, s31, 12
    s_add_u32 s35, s35, s33
    s_add_u32 s35, s35, {hex(WS_O)}
    s_mov_b32 s40, {fx(2.0**100)}
    v_add_f32 v10, v{LA}, v{LA+1}
    s_nop 4
    v_add_f32 v12, v{LB}, v{LB+1}
    v_min_f32 v11, v10, v12
    v_max_f32 v13, v10, v12
    v_cmp_nle_f32 vcc, {fx(2.0**-40)}, v11
    v_cmp_nge_f32 s[38:39], s40, v13
    s_nop 1
    s_or_b64 vcc, vcc, s[38:39]
    s_cbranch_vccz {k.lab('fin')}""")
    k(f"""s_waitcnt vmcnt(0)
    s_mov_b32 s38, 0
    v_mov_b32 v9, 0xff800000
    v_mov_b32 v10, 0xff800000""")
    k.label("mx")
    k(f"""buffer_load_dwordx4 {vr(KR,4)}, v2, s[24:27], s38 offen
    buffer_load_dwordx4 {vr(KR+4,4)}, v2, s[24:27], s38 offen offset:1024
    s_waitcnt vmcnt(0)""")
    k(mfma(SA, KR, QA, "0")); k(mfma(SA, KR + 4, QA + 4))
    k(mfma(SB, KR, QB, "0")); k(mfma(SB, KR + 4, QB + 4))
    k("s_nop 15")
    for i in range(8):
        k(f"v_max3_f32 v9, v9, v{SA+2*i}, v{SA+2*i+1}")
    for i in range(8):
        k(f"v_max3_f32 v10, v10, v{SB+2*i}, v{SB+2*i+1}")
    k(f"s_add_u32 s38, s38, 4096\ns_cmp_lt_u32 s38, 262144\ns_cbranch_scc1 {k.lab('mx')}")
    half_allreduce(k, "v_max_f32", 9, 11)
    half_allreduce(k, "v_max_f32", 10, 11)
    for i in range(16):
        k(f"v_sub_f32 v{NA+i}, 0, v9\nv_sub_f32 v{NB+i}, 0, v10\nv_mov_b32 v{OA+i}, 0\nv_mov_b32 v{OB+i}, 0")
    for i in range(8):
        k(f"v_mov_b32 v{LA+i}, 0")
    k(f"s_mov_b32 s38, 0\ns_mov_b32 s39, {63*4096}")
    k.label("pl")
    k(f"""buffer_load_dwordx4 {vr(KR,4)}, v2, s[24:27], s39 offen
    buffer_load_dwordx4 {vr(KR+4,4)}, v2, s[24:27], s39 offen offset:1024
    buffer_load_dwordx4 {vr(VR,4)}, v2, s[24:27], s38 offen offset:2048
    buffer_load_dwordx4 {vr(VR+4,4)}, v2, s[24:27], s38 offen offset:3072
    s_waitcnt vmcnt(0)""")
    k(mfma(SA, KR, QA, NA)); k(mfma(SA, KR + 4, QA + 4))
    k(mfma(SB, KR, QB, NB)); k(mfma(SB, KR + 4, QB + 4))
    k("s_nop 15")
    for i in range(32):
        k(f"v_exp_f32 v{SA+i}, v{SA+i}")
    for i in range(16):
        k(f"v_cvt_pk_bf16_f32 v{PA+i}, v{SA+2*i}, v{SA+2*i+1}")
    k("s_nop 1")
    for O, P, L in ((OA, PA, LA), (OB, PB, LB)):
        k(mfma(O, VR, P)); k(mfma(O, VR + 4, P + 4))
        k(f"v_smfmac_f32_16x16x64_bf16 {vr(L,4)}, {vr(ONE,4)}, {vr(P,8)}, v{IDX}")
    k(f"""s_mov_b32 s39, s38
    s_add_u32 s38, s38, 4096
    s_cmp_lt_u32 s38, 262144
    s_nop 7
    s_cbranch_scc1 {k.lab('pl')}
    s_nop 7
    v_add_f32 v10, v{LA}, v{LA+1}
    v_add_f32 v12, v{LB}, v{LB+1}""")
    k.label("fin")
    k("v_rcp_f32 v10, v10\nv_rcp_f32 v12, v12\ns_nop 0")
    st = "sc1" if opt("wt", 0) else ""
    for hd, O in enumerate((OA, OB)):
        for i in range(8):
            k(f"v_pk_mul_f32 {vr(O+2*i,2)}, {vr(O+2*i,2)}, {vr(10+2*hd,2)} op_sel_hi:[1,0]")
        for i in range(8):
            k(f"v_cvt_pk_bf16_f32 v{SA+8*hd+i}, v{O+2*i}, v{O+2*i+1}")
            if i & 3 == 3:
                k(f"buffer_store_dwordx4 {vr(SA+8*hd+i-3,4)}, v2, s[20:23], s35 offen offset:{hd*2048+(i>>2)*1024} {st}")
    return k


def k_oproj():
    XL = 65536
    JL = XL + 4 * 5120
    JV = JL + 32768
    JR = JV + 1024
    k = Kern("oproj", 256, 256, JR + 2048, 224)
    k.exit_if_ge(256)
    k.ptr(4, "wo"); k.ptr(6, "ws"); k.ptr(8, "x"); k.ptr(10, "w_in")
    k("v_and_b32 v1, 63, v0\nv_lshlrev_b32 v2, 4, v1")
    k.wave_id(3, 3)
    tile_map_4x8(k, 30, 31)
    k(f"""s_lshl_b32 s32, s30, 2
    s_add_u32 s32, s32, s3
    s_lshl_b32 s33, s32, 16
    s_add_u32 s34, s33, {hex(WS_O)}
    s_mul_i32 s36, s3, 5120
    s_add_u32 s36, s36, {XL}
    s_waitcnt lgkmcnt(0)""")
    k.srd(12, 6, 65536, "s34"); k.srd(16, 4, 1024 * 2048); k.srd(20, 6, WS_END); k.srd(24, 8, 2048 * 2048)
    JVR = 208

    def ex_x():
        k(f"""v_lshrrev_b32 v9, 3, v1
        v_lshlrev_b32 v9, 11, v9
        v_lshrrev_b32 v10, 4, v1
        v_xor_b32 v10, v10, v1
        v_and_b32 v10, 7, v10
        v_lshl_add_u32 v9, v10, 4, v9
        v_xor_b32 v10, 64, v9
        v_add_u32 v10, {16384-1024}, v10
        s_lshl_b32 s35, s31, 7
        s_add_u32 s35, s35, s33
        s_add_u32 s37, s35, {32768-2048}
        s_mov_b32 m0, s36
        v_bfe_u32 v11, v1, 4, 1""")
        k.vm("buffer_load_dwordx4 v9, s[24:27], s35 offen lds")
        k.vm("buffer_load_dwordx4 v10, s[24:27], s35 offen offset:1024 lds")
        k.vm("buffer_load_dwordx4 v9, s[24:27], s37 offen offset:2048 lds")
        k.vm("buffer_load_dwordx4 v10, s[24:27], s37 offen offset:3072 lds")

    def ex_vec():
        k(f"""v_lshlrev_b32 v11, 13, v11
        v_and_b32 v12, 15, v1
        v_lshl_add_u32 v11, v12, 4, v11
        s_add_u32 s37, s36, 4096
        s_mov_b32 m0, s37
        s_lshl_b32 s35, s31, 8
        s_add_u32 s35, s35, {WS_MODF + 2*4096}""")
        k.vm("buffer_load_dwordx4 v11, s[20:23], s35 offen lds", "vec")

    def ex_job0():
        k.srd(60, 10, 1024 * 7168)
        k(f"""s_lshr_b32 s38, s2, 4
        s_cmp_ge_u32 s38, 7
        s_cselect_b32 s39, 7, 0
        s_cselect_b32 s58, 28, 0
        s_sub_u32 s38, s38, s39
        s_and_b32 s39, s2, 3
        s_lshl_b32 s59, s39, 2
        s_mul_i32 s39, s39, 3
        s_add_u32 s39, s39, 12
        s_cmp_lt_u32 s38, 4
        s_cselect_b32 s39, s59, s39
        s_add_u32 s58, s58, s39
        s_add_u32 s58, s58, s38
        s_bfe_u32 s59, s2, 0x10002
        s_lshl_b32 s59, s59, 1
        s_bfe_u32 s39, s2, 0x10003
        s_add_u32 s59, s59, s39
        s_lshl_b32 s38, s59, 2
        s_add_u32 s38, s38, s3
        s_lshl_b32 s39, s38, 8
        s_add_u32 s39, s39, {WS_MODF + 3*4096}
        v_lshrrev_b32 v12, 5, v1
        v_xor_b32 v12, 1, v12
        v_lshlrev_b32 v12, 12, v12
        v_and_b32 v13, 31, v1
        v_lshl_add_u32 v12, v13, 3, v12""")
        k.vm(f"buffer_load_dwordx2 {vr(JVR,2)}, v12, s[20:23], s39 offen", "jv")
        k(f"""s_mul_i32 s38, s38, {64*7168}
        s_lshl_b32 s39, s58, 7
        s_add_u32 s38, s38, s39
        s_cmp_lt_u32 s2, 224
        s_cselect_b32 s62, s62, 0
        s_lshl_b32 s64, s3, 13
        s_add_u32 s64, s64, {JL}""")

    def ex_job1():
        job_issue(k, 60, 7168, 38, 64, 12, 13, 39)

    gemm64(k, 16, "perm", 12, 16, 3, 30, 31, [ex_x, ex_vec, ex_job0, ex_job1], color=opt("colo", 1))
    XR, GA, CB, T = 80, 96, 128, 160
    k(f"""v_and_b32 v9, 31, v1
    v_lshlrev_b32 v10, 7, v9
    v_bfe_u32 v11, v1, 1, 3
    v_lshl_add_u32 v10, v11, 4, v10
    v_lshrrev_b32 v11, 5, v1
    v_lshl_add_u32 v10, v11, 3, v10
    v_add_u32 v10, s36, v10
    v_lshlrev_b32 v12, 4, v11
    v_add_u32 v12, s36, v12""")
    k.wait(["vec"])
    for c in range(8):
        k(f"v_xor_b32 v13, {c*16}, v10\nds_read_b64 {vr(XR+2*c,2)}, v13")
    for c in range(4):
        k(f"ds_read_b128 {vr(GA+4*c,4)}, v12 offset:{4096+c*32}")
    k("s_waitcnt lgkmcnt(4)")
    for c in range(4, 8):
        k(f"ds_read_b128 {vr(GA+4*c,4)}, v12 offset:{4096+c*32}")
    for c in range(4):
        k(f"ds_read_b128 {vr(CB+4*c,4)}, v12 offset:{4096+256+c*32}")
    for i in range(16):
        k(f"v_lshlrev_b32 v{T+2*i}, 16, v{XR+i}\nv_and_b32 v{T+2*i+1}, 0xffff0000, v{XR+i}")
    k("s_waitcnt lgkmcnt(4)")
    for c in range(4, 8):
        k(f"ds_read_b128 {vr(CB+4*c,4)}, v12 offset:{4096+256+c*32}")
    for i in range(16):
        k(f"v_pk_fma_f32 {vr(G_ACC+2*i,2)}, {vr(G_ACC+2*i,2)}, {vr(GA+2*i,2)}, {vr(T+2*i,2)}")
    k(f"""s_lshl_b32 s35, s31, 12
    s_add_u32 s35, s35, s33
    s_add_u32 s37, s35, {hex(WS_X2P)}
    s_add_u32 s35, s35, {hex(WS_X2)}
    s_waitcnt lgkmcnt(0)""")
    st = "sc1" if opt("wt", 0) else ""
    for i in range(16):
        k(f"v_pk_mul_f32 {vr(T+2*i,2)}, {vr(G_ACC+2*i,2)}, {vr(CB+2*i,2)}")
    for i in range(16):
        k(f"v_cvt_pk_bf16_f32 v{192+i}, v{T+2*i}, v{T+2*i+1}")
        if i & 3 == 3:
            k.vm(f"buffer_store_dwordx4 {vr(192+i-3,4)}, v2, s[20:23], s37 offen offset:{(i>>2)*1024} {st}")
    for i in range(16):
        k(f"v_cvt_pk_bf16_f32 v{XR+i}, v{G_ACC+2*i}, v{G_ACC+2*i+1}")
        if i & 3 == 3:
            k.vm(f"buffer_store_dwordx4 {vr(XR+i-3,4)}, v2, s[20:23], s35 offen offset:{(i>>2)*1024} {st}")
    k.stamp(3)
    k(f"v_pk_add_f32 v[10:11], {vr(G_ACC,2)}, {vr(G_ACC+2,2)}")
    for i in range(2, 16):
        k(f"v_pk_add_f32 v[10:11], v[10:11], {vr(G_ACC+2*i,2)}")
    k("v_add_f32 v10, v10, v11")
    half_allreduce(k, "v_add_f32", 10, 11)
    k(f"v_mul_f32 v10, {fx(1/64)}, v10\nv_mov_b32 v12, 0\nv_mov_b32 v13, 0")
    for i in range(16):
        k(f"v_pk_add_f32 {vr(T+2*i,2)}, {vr(G_ACC+2*i,2)}, v[10:11] op_sel_hi:[1,0] neg_lo:[0,1] neg_hi:[0,1]")
    for i in range(16):
        k(f"v_pk_fma_f32 v[12:13], {vr(T+2*i,2)}, {vr(T+2*i,2)}, v[12:13]")
    k("v_add_f32 v11, v12, v13")
    half_allreduce(k, "v_add_f32", 11, 12)
    k(f"""s_lshl_b32 s35, s31, 14
    s_lshl_b32 s37, s32, 8
    s_add_u32 s35, s35, s37
    s_add_u32 s35, s35, {hex(WS_ST2)}
    v_lshlrev_b32 v9, 3, v9""")
    k.vm("buffer_store_dwordx2 v[10:11], v9, s[20:23], s35 offen")
    k.stamp(4)
    k(f"s_cmp_ge_u32 s2, 224\ns_cbranch_scc1 {k.lab('end')}")
    k.wait([("job", 7)])
    k(f"""s_lshl_b32 s65, s3, 8
    s_add_u32 s65, s65, {JV}
    v_cvt_pk_bf16_f32 v{JVR}, v{JVR}, v{JVR+1}
    v_lshl_add_u32 v12, v1, 2, s65
    ds_write_b32 v12, v{JVR}""")
    job_compute(k, 64, 65, True, 96, waits=False)
    job_reduce(k, 4, 3, JR, True, 96, 39)
    k(f"""s_cmp_ge_u32 s3, 2
    s_cbranch_scc1 {k.lab('end')}
    s_lshl_b32 s38, s59, 1
    s_add_u32 s38, s38, s3
    s_mul_i32 s38, s38, {3584*4}
    s_lshl_b32 s39, s58, 8
    s_add_u32 s38, s38, s39
    s_add_u32 s38, s38, {hex(WS_UT)}
    v_lshlrev_b32 v2, 2, v1
    buffer_store_dword v96, v2, s[20:23], s38 offen""")
    return k
```

```python
from g_base import *
from g_front import *
from g_mid import *
from g_back import *


def build():
    ks = [k_mod(), k_lnkv(), k_attn(), k_oproj(), k_win(), k_wsp(), k_wout()]
    for e in range(opt("empty", 0)):
        ks.append(Kern(f"nop{e}", 256, 256, 0, 8))
    for i, k in enumerate(ks):
        k.idx = i
    head = open(f"cdna_kernels/{NAME}.s.ref").read().split("; Override launch geometry")[0]
    dup = opt("dup", 0)
    out = head + "\n".join("\n".join([k.launch()] * (2 if dup and k.name != "win" else 1)) for k in ks) + "\n"
    out += '.amdgcn_target "amdgcn-amd-amdhsa--gfx950"\n.text\n'
    out += "".join(k.text() for k in ks)
    out += '.section .rodata,"a"\n' + "".join(k.desc() for k in ks)
    return out


if __name__ == "__main__":
    path = sys.argv[1] if len(sys.argv) > 1 else f"cdna_kernels/{NAME}.s"
    open(path, "w").write(build())
    print("wrote", path)
```
